```python
import torch

def _softmax(x, axis=-1):
    return torch.softmax(x, dim=axis)
def _gelu(x):
    return torch.nn.functional.gelu(x, approximate="tanh")
def _silu(x):
    return torch.nn.functional.silu(x)
def _sigmoid(x):
    return torch.sigmoid(x)
def _layernorm(x, axis=-1, eps=1e-5):
    m = x.mean(dim=axis, keepdim=True)
    v = x.var(dim=axis, keepdim=True, unbiased=False)
    return (x - m) / torch.sqrt(v + eps)
def _scatter_add(tgt, idx, src, axis=0):
    return tgt.clone().index_add_(axis, idx, src)
def _segment_sum(src, seg, n):
    out = torch.zeros((n,) + src.shape[1:], dtype=src.dtype)
    return out.index_add_(0, seg, src)
def _pad(x, pw):
    flat = tuple(v for pair in reversed(pw) for v in pair)
    return torch.nn.functional.pad(x, flat)

kernel_name = 'recurrent_scan__linear_attn_block__glu_gated_swiglu__prompt'

def setup_inputs():

    _w = (lambda a: (lambda t: t.to(torch.bfloat16) if t.is_floating_point() else t)(torch.as_tensor(a)))
    def _A_setup():
        B, S, D = 1, 2048, 448
        return {
            "x": _w((lambda *s: torch.randn(*s, dtype=torch.bfloat16) * 0.05)(B, S, D)),
            "wqkv": _w((lambda *s: torch.randn(*s, dtype=torch.bfloat16) * 0.8)(D, 3 * D)),
            "wo": _w((lambda *s: torch.randn(*s, dtype=torch.bfloat16) * 0.8)(D, D)),
        }
    _A_in = _A_setup()

    def _B_setup():
        B, S, D, F = 1, 2048, 448, 1792
        return {
            "x": _w((lambda *s: torch.randn(*s, dtype=torch.bfloat16) * 0.05)(B, S, D)),
            "w1": _w((lambda *s: torch.randn(*s, dtype=torch.bfloat16) * 0.2)(D, F) * (2.0 / D) ** 0.5),
            "w3": _w((lambda *s: torch.randn(*s, dtype=torch.bfloat16) * 0.2)(D, F) * (2.0 / D) ** 0.5),
            "w2": _w((lambda *s: torch.randn(*s, dtype=torch.bfloat16) * 0.2)(F, D) * (2.0 / F) ** 0.5),
        }
    _B_in = _B_setup()

    return {
        "A_x": _A_in["x"],
        "A_wqkv": _A_in["wqkv"],
        "A_wo": _A_in["wo"],
        "B_x": _B_in["x"],
        "B_w1": _B_in["w1"],
        "B_w3": _B_in["w3"],
        "B_w2": _B_in["w2"],
    }

def reference(A_x, A_wqkv, A_wo, B_x, B_w1, B_w3, B_w2):
    def _A_ref(x, wqkv, wo):
        B, S, D = x.shape
        H = 16; Dh = D // H
        qkv = (lambda x, *d: x.permute(*d))((x @ wqkv).reshape(B, S, 3, H, Dh), 2, 0, 3, 1, 4)
        q, k, v = qkv[0], qkv[1], qkv[2]
        phi = lambda t: torch.where(t > 0, t + 1, torch.exp(t)) + 1e-6
        pq, pk = phi(q), phi(k)
        kv = torch.einsum("bhsd,bhse->bhde", pk, v)
        z = torch.einsum("bhsd->bhd", pk)
        num = torch.einsum("bhqd,bhde->bhqe", pq, kv)
        den = torch.einsum("bhqd,bhd->bhq", pq, z)[..., None] + 1e-6
        o = num / den
        return (lambda x, *d: x.permute(*d))(o, 0, 2, 1, 3).reshape(B, S, D) @ wo

    def _B_ref(x, w1, w3, w2):
        gate = torch.einsum("bsd,df->bsf", x, w1)
        up = torch.einsum("bsd,df->bsf", x, w3)
        h = _silu(gate) * up
        out = torch.einsum("bsf,fd->bsd", h, w2)
        return out

    x = A_x
    xn = _layernorm(x, axis=-1)
    s = _A_ref(xn, A_wqkv, A_wo)
    g = _silu(_B_ref(xn, B_w1, B_w3, B_w2))
    return x + s * g
```

```python
import sys
NAME = "recurrent_scan__linear_attn_block__glu_gated_swiglu__prompt"
WS_PQ = 0x000000; WS_H = 0x200000; WS_KVP = 0xA00000; WS_KV = 0xB00000; WS_G = 0xC00000
L2E = 0x3fb8aa3b
EPS6 = 0x358637bd

class G:
    def __init__(s): s.o = []
    def __call__(s, t): s.o.append("    " + t)
    def lab(s, t): s.o.append(t + ":")
    def nop(s, n=0): s(f"s_nop {n}")

def srd(g, d, slot, nbytes, base_add=0):
    if base_add:
        g(f"s_add_u32 s{d}, s{d}, {base_add}"); g(f"s_addc_u32 s{d+1}, s{d+1}, 0")
    g(f"s_and_b32 s{d+1}, s{d+1}, 0xffff")
    g(f"s_mov_b32 s{d+2}, {nbytes}"); g(f"s_mov_b32 s{d+3}, 0x20000")

def rnd2(g, a, b, t):
    g(f"v_cvt_pk_bf16_f32 v{t}, v{a}, v{b}")
    g(f"v_lshlrev_b32 v{a}, 16, v{t}")
    g(f"v_and_b32 v{b}, 0xffff0000, v{t}")

def phi_pack(g, acc, out, t):
    for i in range(0, 16, 2):
        a, b = acc+i, acc+i+1
        rnd2(g, a, b, t)
        g(f"v_mul_f32 v{t}, s90, v{a}"); g(f"v_mul_f32 v{t+1}, s90, v{b}")
        g(f"v_exp_f32 v{t}, v{t}"); g(f"v_exp_f32 v{t+1}, v{t+1}")
        g(f"v_add_f32 v{t+2}, 1.0, v{a}"); g(f"v_add_f32 v{t+3}, 1.0, v{b}")
        g(f"v_cmp_lt_f32 vcc, 0, v{a}"); g.nop(1)
        g(f"v_cndmask_b32 v{a}, v{t}, v{t+2}, vcc")
        g(f"v_cmp_lt_f32 vcc, 0, v{b}"); g.nop(1)
        g(f"v_cndmask_b32 v{b}, v{t+1}, v{t+3}, vcc")
        rnd2(g, a, b, t)
        g(f"v_add_f32 v{a}, s91, v{a}"); g(f"v_add_f32 v{b}, s91, v{b}")
        g(f"v_cvt_pk_bf16_f32 v{out+i//2}, v{a}, v{b}")

def silu_rnd(g, a, b, t):
    for r, tt in ((a, t), (b, t+1)):
        g(f"v_mul_f32 v{tt}, s92, v{r}")
        g(f"v_exp_f32 v{tt}, v{tt}"); g.nop()
        g(f"v_add_f32 v{tt}, 1.0, v{tt}")
        g(f"v_rcp_f32 v{tt}, v{tt}"); g.nop()
        g(f"v_mul_f32 v{r}, v{r}, v{tt}")
    rnd2(g, a, b, t)

def consts(g):
    g(f"s_mov_b32 s90, {L2E}"); g(f"s_mov_b32 s91, {EPS6}"); g(f"s_mov_b32 s92, {L2E | 0x80000000}")

def kdesc(name, vg, sg=100):
    return f""".section .rodata,"a"
.p2align 6
.amdhsa_kernel {name}
  .amdhsa_next_free_vgpr {vg}
  .amdhsa_next_free_sgpr {sg}
  .amdhsa_accum_offset {vg}
  .amdhsa_group_segment_fixed_size 0
  .amdhsa_kernarg_size 80
  .amdhsa_user_sgpr_count 2
  .amdhsa_user_sgpr_kernarg_segment_ptr 1
  .amdhsa_system_sgpr_workgroup_id_x 1
.end_amdhsa_kernel
"""

def k1():
    g = G()
    A = 16; ACC0 = 128; ACC1 = 144; BF = 160; T = 192; PK = 224; VV = 232; KVA = 240
    SLAB = 28672; RED = 3*SLAB
    g("s_cmp_ge_u32 s2, 256"); g("s_cbranch_scc1 K1_done")
    g("s_load_dwordx2 s[8:9], s[0:1], 0"); g("s_load_dwordx2 s[12:13], s[0:1], 8")
    g("s_load_dwordx2 s[16:17], s[0:1], 32"); g("s_load_dwordx2 s[20:21], s[0:1], 40")
    g("s_load_dwordx2 s[24:25], s[0:1], 72")
    consts(g)
    g("s_lshr_b32 s4, s2, 4"); g("s_and_b32 s5, s2, 15")
    g("v_and_b32 v1, 63, v0"); g("v_lshrrev_b32 v2, 6, v0")
    g.nop(); g("v_readfirstlane_b32 s6, v2")
    g("s_waitcnt lgkmcnt(0)")
    srd(g, 8, 0, 2048*896); srd(g, 12, 1, 448*2688); srd(g, 16, 4, 448*3584); srd(g, 20, 5, 448*3584)
    srd(g, 24, 9, 0x1000000)
    g("s_lshl_b32 s7, s4, 7"); g("s_lshl_b32 s30, s6, 5"); g("s_add_u32 s7, s7, s30")
    g("v_and_b32 v3, 31, v1"); g("v_lshrrev_b32 v4, 5, v1")
    g("v_add_u32 v5, s7, v3"); g("s_movk_i32 s30, 896"); g("v_mul_lo_u32 v5, v5, s30")
    g("v_lshl_add_u32 v5, v4, 4, v5")
    for ks in range(28):
        g(f"buffer_load_dwordx4 v[{A+4*ks}:{A+4*ks+3}], v5, s[8:11], 0 offen offset:{ks*32}")
    g("v_lshrrev_b32 v6, 3, v0"); g("v_and_b32 v7, 7, v0")
    g("s_movk_i32 s30, 2688"); g("v_mul_lo_u32 v8, v6, s30"); g("v_lshl_add_u32 v8, v7, 3, v8")
    g("s_mul_i32 s31, s5, 56")
    g("v_lshrrev_b32 v9, 2, v6"); g("v_lshlrev_b32 v9, 8, v9"); g("v_and_b32 v10, 3, v6")
    g("v_lshl_add_u32 v9, v10, 6, v9"); g("v_lshl_add_u32 v9, v7, 3, v9")
    g("v_cmp_eq_u32 s[32:33], 7, v7")
    for u in range(3):
        g(f"s_add_u32 s30, s31, {u*896}")
        for it in range(14):
            g(f"s_add_u32 s34, s30, {it*32*2688}")
            g(f"buffer_load_dwordx2 v[{T+2*it}:{T+2*it+1}], v8, s[12:15], s34 offen")
        g("s_waitcnt vmcnt(0)")
        for it in range(14):
            g(f"v_cndmask_b32 v{T+2*it}, v{T+2*it}, 0, s[32:33]"); g(f"v_cndmask_b32 v{T+2*it+1}, v{T+2*it+1}, 0, s[32:33]")
            g(f"ds_write_b64 v9, v[{T+2*it}:{T+2*it+1}] offset:{it*2048}")
        g(f"v_add_u32 v9, {SLAB}, v9")
    t = 0
    def unpack(r, lo, hi):
        g(f"v_lshlrev_b32 v{lo}, 16, v{r}"); g(f"v_and_b32 v{hi}, 0xffff0000, v{r}")
    g("v_mov_b32 v12, 0"); g("v_mov_b32 v13, 0")
    for r in range(A, A+112):
        unpack(r, 10, 11); g("v_pk_add_f32 v[12:13], v[12:13], v[10:11]")
    g("v_add_f32 v12, v12, v13")
    g("v_lshlrev_b32 v14, 2, v1"); g("v_xor_b32 v14, 128, v14")
    g("ds_bpermute_b32 v13, v14, v12"); g("s_waitcnt lgkmcnt(0)")
    g("v_add_f32 v12, v12, v13"); g("v_mul_f32 v12, 0x3b124925, v12")
    g("v_mov_b32 v13, v12"); g("v_mov_b32 v6, 0"); g("v_mov_b32 v7, 0")
    for r in range(A, A+112):
        unpack(r, 10, 11); g("v_pk_add_f32 v[10:11], v[10:11], v[12:13] neg_lo:[0,1] neg_hi:[0,1]")
        g("v_pk_fma_f32 v[6:7], v[10:11], v[10:11], v[6:7]")
    g("v_add_f32 v6, v6, v7")
    g("ds_bpermute_b32 v7, v14, v6"); g("s_waitcnt lgkmcnt(0)")
    g("v_add_f32 v6, v6, v7"); g("v_mul_f32 v6, 0x3b124925, v6")
    rnd2(g, 6, 12, 8)
    g("v_add_f32 v6, 0x3727c5ac, v6"); rnd2(g, 6, 7, 8)
    g("v_sqrt_f32 v6, v6"); g.nop(); rnd2(g, 6, 7, 8)
    g("v_rcp_f32 v6, v6"); g.nop(); g("v_mov_b32 v7, v6"); g("v_mov_b32 v13, v12")
    for r in range(A, A+112):
        unpack(r, 10, 11); g("v_pk_add_f32 v[10:11], v[10:11], v[12:13] neg_lo:[0,1] neg_hi:[0,1]")
        g(f"v_cvt_pk_bf16_f32 v{r}, v10, v11"); unpack(r, 10, 11)
        g("v_pk_mul_f32 v[10:11], v[10:11], v[6:7]")
        g(f"v_cvt_pk_bf16_f32 v{r}, v10, v11")
    g("v_lshrrev_b32 v6, 5, v1"); g("v_lshlrev_b32 v6, 9, v6")
    g("v_bfe_u32 v7, v1, 2, 2"); g("v_lshl_add_u32 v6, v7, 6, v6")
    g("v_bfe_u32 v7, v1, 4, 1"); g("v_lshl_add_u32 v6, v7, 5, v6")
    g("v_and_b32 v7, 3, v1"); g("v_lshl_add_u32 v6, v7, 3, v6")
    g("v_lshrrev_b32 v7, 4, v1"); g("v_lshlrev_b32 v7, 2, v7"); g("v_bfe_u32 v8, v1, 2, 2"); g("v_add_u32 v7, v7, v8")
    g("s_movk_i32 s30, 3584"); g("v_mul_lo_u32 v7, v7, s30"); g("v_and_b32 v8, 3, v1"); g("v_lshl_add_u32 v7, v8, 4, v7")
    g("v_add_u32 v8, s7, v3")
    g("v_lshlrev_b32 v9, 10, v8"); g("v_lshl_add_u32 v9, v4, 5, v9"); g("s_lshl_b32 s30, s5, 6"); g("v_add_u32 v9, s30, v9")
    g("s_movk_i32 s30, 3584"); g("v_mul_lo_u32 v15, v8, s30"); g("v_lshl_add_u32 v15, v4, 4, v15")
    g("s_mul_i32 s30, s5, 224"); g(f"s_add_u32 s30, s30, {WS_H}"); g("v_add_u32 v15, s30, v15")
    g("s_mul_i32 s35, s5, 224")
    state = {"out": []}
    def issue_slab(u):
        p, wh = (u-3)//2, (u-3)&1
        sr = 16 if wh == 0 else 20
        for q in range(7):
            g(f"s_mul_i32 s30, s6, {7*1024}"); g(f"s_add_u32 s30, s30, {(u%3)*SLAB + q*1024}"); g("s_mov_b32 m0, s30")
            g(f"s_mul_i32 s30, s6, {7*16*3584}"); g(f"s_add_u32 s30, s30, {q*16*3584 + p*64}"); g("s_add_u32 s30, s30, s35")
            g(f"buffer_load_dwordx4 v7, s[{sr}:{sr+3}], s30 offen lds")
        state["out"].append(("slab", u, 7))
    def wait_slab(u):
        n = 0; found = False
        for it in state["out"]:
            if found: n += it[2]
            if it[0] == "slab" and it[1] == u: found = True
        if found: g(f"s_waitcnt vmcnt({n})")
    D = 4
    for u in range(11):
        wait_slab(u)
        g("s_waitcnt lgkmcnt(0)"); g("s_barrier")
        if 3 <= u+2 <= 10: issue_slab(u+2)
        acc = ACC1 if (u >= 3 and (u-3)&1) else ACC0
        for i in range(16): g(f"v_mov_b32 v{acc+i}, 0")
        base = 0
        g(f"v_add_u32 v2, {(u%3)*SLAB}, v6")
        def rd(ks):
            b = BF + 4*(ks % 8)
            g(f"ds_read_b64_tr_b16 v[{b}:{b+1}], v2 offset:{base+ks*1024}")
            g(f"ds_read_b64_tr_b16 v[{b+2}:{b+3}], v2 offset:{base+ks*1024+256}")
        for ks in range(D): rd(ks)
        for ks in range(28):
            if ks + D < 28: rd(ks+D)
            g(f"s_waitcnt lgkmcnt({2*min(D, 27-ks)})")
            b = BF + 4*(ks % 8); a = A + 4*ks
            if u == 0 or u >= 3:
                g(f"v_mfma_f32_32x32x16_bf16 v[{acc}:{acc+15}], v[{b}:{b+3}], v[{a}:{a+3}], v[{acc}:{acc+15}]")
            else:
                g(f"v_mfma_f32_32x32x16_bf16 v[{acc}:{acc+15}], v[{a}:{a+3}], v[{b}:{b+3}], v[{acc}:{acc+15}]")
        g.nop(15); g.nop(3)
        if u == 0:
            phi_pack(g, ACC0, PK, T)
            g(f"buffer_store_dwordx4 v[{PK}:{PK+3}], v9, s[24:27], 0 offen")
            g(f"buffer_store_dwordx4 v[{PK+4}:{PK+7}], v9, s[24:27], 0 offen offset:16")
            state["out"].append(("st", u, 2)); g.nop(1)
        elif u == 1:
            phi_pack(g, ACC0, PK, T)
            g("v_cmp_gt_u32 vcc, 28, v3"); g.nop(1)
            for i in range(8): g(f"v_cndmask_b32 v{PK+i}, 0, v{PK+i}, vcc")
        elif u == 2:
            for i in range(8): g(f"v_cvt_pk_bf16_f32 v{VV+i}, v{ACC0+2*i}, v{ACC0+2*i+1}")
            g("v_cmp_eq_u32 vcc, 28, v3"); g(f"v_mov_b32 v{T}, 0x3f803f80"); g.nop(1)
            for i in range(8): g(f"v_cndmask_b32 v{VV+i}, v{VV+i}, v{T}, vcc")
            for i in range(16): g(f"v_mov_b32 v{KVA+i}, 0")
            g.nop(1)
            g(f"v_mfma_f32_32x32x16_bf16 v[{KVA}:{KVA+15}], v[{PK}:{PK+3}], v[{VV}:{VV+3}], v[{KVA}:{KVA+15}]")
            g(f"v_mfma_f32_32x32x16_bf16 v[{KVA}:{KVA+15}], v[{PK+4}:{PK+7}], v[{VV+4}:{VV+7}], v[{KVA}:{KVA+15}]")
            g.nop(15); g.nop(3)
            g("v_lshlrev_b32 v10, 4, v1"); g("s_lshl_b32 s30, s6, 12"); g(f"s_add_u32 s30, s30, {RED}"); g("v_add_u32 v10, s30, v10")
            for q in range(4): g(f"ds_write_b128 v10, v[{KVA+4*q}:{KVA+4*q+3}] offset:{q*1024}")
            g("s_waitcnt lgkmcnt(0)"); g("s_barrier")
            g("v_lshlrev_b32 v10, 4, v1"); g("s_lshl_b32 s30, s6, 10"); g(f"s_add_u32 s30, s30, {RED}"); g("v_add_u32 v10, s30, v10")
            for w in range(4): g(f"ds_read_b128 v[{T+4*w}:{T+4*w+3}], v10 offset:{w*4096}")
            g("s_waitcnt lgkmcnt(0)")
            for w in range(1, 4):
                for i in range(4): g(f"v_add_f32 v{T+i}, v{T+i}, v{T+4*w+i}")
            g("v_lshlrev_b32 v10, 6, v1"); g("s_lshl_b32 s30, s4, 16"); g("s_lshl_b32 s31, s5, 12"); g("s_add_u32 s30, s30, s31")
            g("s_lshl_b32 s31, s6, 4"); g("s_add_u32 s30, s30, s31"); g(f"s_add_u32 s30, s30, {WS_KVP}")
            g(f"buffer_store_dwordx4 v[{T}:{T+3}], v10, s[24:27], s30 offen")
            state["out"].append(("st", u, 1)); g.nop(1)
        elif (u-3)&1:
            p = (u-3)//2
            for i in range(0, 16, 2):
                a, b = ACC0+i, ACC0+i+1; c, d = ACC1+i, ACC1+i+1
                rnd2(g, a, b, T); rnd2(g, c, d, T); silu_rnd(g, a, b, T)
                g(f"v_mul_f32 v{a}, v{a}, v{c}"); g(f"v_mul_f32 v{b}, v{b}, v{d}")
                g(f"v_cvt_pk_bf16_f32 v{PK+i//2}, v{a}, v{b}")
            g(f"buffer_store_dwordx4 v[{PK}:{PK+3}], v15, s[24:27], 0 offen offset:{p*64}")
            ns = 1
            if p < 3:
                g(f"buffer_store_dwordx4 v[{PK+4}:{PK+7}], v15, s[24:27], 0 offen offset:{p*64+32}"); ns = 2
            state["out"].append(("st", u, ns)); g.nop(1)
    g.lab("K1_done"); g("s_endpgm")
    return g.o

def k2():
    g = G()
    ACC = 64; HF = 128; BF = 192; T = 224
    g("s_cmp_ge_u32 s2, 240"); g("s_cbranch_scc1 K2_done")
    g("s_load_dwordx2 s[8:9], s[0:1], 48"); g("s_load_dwordx2 s[24:25], s[0:1], 72")
    consts(g)
    g("v_and_b32 v1, 63, v0"); g("v_lshrrev_b32 v2, 6, v0"); g.nop(); g("v_readfirstlane_b32 s6, v2")
    g("s_waitcnt lgkmcnt(0)")
    srd(g, 8, 6, 1792*896); srd(g, 24, 9, 0x1000000)
    g("s_cmp_lt_u32 s2, 224"); g("s_cbranch_scc1 K2_gemm")
    g("s_cmp_lg_u32 s6, 0"); g("s_cbranch_scc1 K2_done")
    g("s_sub_u32 s4, s2, 224"); g("v_lshlrev_b32 v3, 6, v1")
    for i in range(16): g(f"v_mov_b32 v{16+i}, 0")
    for rb in range(16):
        g("s_lshl_b32 s30, s4, 12"); g(f"s_add_u32 s30, s30, {WS_KVP + rb*65536}")
        for q in range(4): g(f"buffer_load_dwordx4 v[{32+4*q}:{35+4*q}], v3, s[24:27], s30 offen offset:{q*16}")
        g("s_waitcnt vmcnt(0)")
        for i in range(16): g(f"v_add_f32 v{16+i}, v{16+i}, v{32+i}")
    for i in range(8): g(f"v_cvt_pk_bf16_f32 v{48+i}, v{16+2*i}, v{17+2*i}")
    g("v_lshlrev_b32 v3, 5, v1"); g("s_lshl_b32 s30, s4, 11"); g(f"s_add_u32 s30, s30, {WS_KV}")
    g("buffer_store_dwordx4 v[48:51], v3, s[24:27], s30 offen"); g("buffer_store_dwordx4 v[52:55], v3, s[24:27], s30 offen offset:16")
    g("s_branch K2_done")
    g.lab("K2_gemm")
    g("s_mul_hi_u32 s4, s2, 0x24924925"); g("s_mul_i32 s5, s4, 7"); g("s_sub_u32 s5, s2, s5")
    g("v_and_b32 v3, 31, v1"); g("v_lshrrev_b32 v4, 5, v1")
    g("s_lshl_b32 s7, s4, 6"); g("v_add_u32 v5, s7, v3"); g("s_movk_i32 s30, 3584"); g("v_mul_lo_u32 v5, v5, s30")
    g("v_lshl_add_u32 v5, v4, 4, v5"); g("s_mul_i32 s30, s6, 896"); g(f"s_add_u32 s30, s30, {WS_H}"); g("v_add_u32 v5, s30, v5")
    g(f"v_add_u32 v8, {32*3584}, v5")
    g("v_lshrrev_b32 v6, 5, v1"); g("v_lshlrev_b32 v6, 9, v6")
    g("v_bfe_u32 v7, v1, 2, 2"); g("v_lshl_add_u32 v6, v7, 6, v6")
    g("v_bfe_u32 v7, v1, 4, 1"); g("v_lshl_add_u32 v6, v7, 5, v6")
    g("v_and_b32 v7, 3, v1"); g("v_lshl_add_u32 v6, v7, 3, v6"); g("s_lshl_b32 s31, s6, 14"); g("v_add_u32 v6, s31, v6")
    g("v_bfe_u32 v7, v1, 4, 1"); g("v_lshlrev_b32 v7, 3, v7"); g("v_lshrrev_b32 v9, 5, v1"); g("v_lshl_add_u32 v7, v9, 2, v7")
    g("v_bfe_u32 v9, v1, 2, 2"); g("v_add_u32 v7, v7, v9"); g("s_movk_i32 s30, 896"); g("v_mul_lo_u32 v7, v7, s30")
    g("v_and_b32 v9, 3, v1"); g("v_lshl_add_u32 v7, v9, 4, v7")
    g("s_mul_i32 s32, s6, {}".format(28*16*896)); g("s_lshl_b32 s30, s5, 7"); g("s_add_u32 s32, s32, s30")
    for i in range(64): g(f"v_mov_b32 v{ACC+i}, 0")
    P = 6
    def issue(ks):
        for un in range(2):
            g(f"s_add_u32 s30, s31, {(ks%8)*2048 + un*1024}"); g("s_mov_b32 m0, s30")
            g(f"s_add_u32 s30, s32, {ks*16*896 + un*64}")
            g(f"buffer_load_dwordx4 v7, s[8:11], s30 offen lds")
        h = HF + 8*(ks % 8)
        g(f"buffer_load_dwordx4 v[{h}:{h+3}], v5, s[24:27], 0 offen offset:{ks*32}")
        g(f"buffer_load_dwordx4 v[{h+4}:{h+7}], v8, s[24:27], 0 offen offset:{ks*32}")
    for ks in range(P): issue(ks)
    for ks in range(28):
        if ks + P < 28: issue(ks+P)
        g(f"s_waitcnt vmcnt({4*min(P, 27-ks)})")
        o = (ks%8)*2048
        for un in range(2):
            g(f"ds_read_b64_tr_b16 v[{BF+4*un}:{BF+4*un+1}], v6 offset:{o+un*1024}")
            g(f"ds_read_b64_tr_b16 v[{BF+4*un+2}:{BF+4*un+3}], v6 offset:{o+un*1024+256}")
        g("s_waitcnt lgkmcnt(0)")
        h = HF + 8*(ks % 8)
        for un in range(2):
            for t in range(2):
                a = ACC + 16*(2*un+t)
                g(f"v_mfma_f32_32x32x16_bf16 v[{a}:{a+15}], v[{BF+4*un}:{BF+4*un+3}], v[{h+4*t}:{h+4*t+3}], v[{a}:{a+15}]")
    g.nop(15); g.nop(3)
    g("s_barrier")
    g("v_lshlrev_b32 v10, 4, v1"); g("s_lshl_b32 s30, s6, 14"); g("v_add_u32 v10, s30, v10")
    for q in range(16): g(f"ds_write_b128 v10, v[{ACC+4*q}:{ACC+4*q+3}] offset:{q*1024}")
    g("s_waitcnt lgkmcnt(0)"); g("s_barrier")
    g("v_lshlrev_b32 v10, 4, v1"); g("s_lshl_b32 s30, s6, 12"); g("v_add_u32 v10, s30, v10")
    for w in range(4):
        for q in range(4): g(f"ds_read_b128 v[{ACC+16*w+4*q}:{ACC+16*w+4*q+3}], v10 offset:{w*16384+q*1024}")
    g("s_waitcnt lgkmcnt(0)")
    for w in range(1, 4):
        for i in range(16): g(f"v_add_f32 v{ACC+i}, v{ACC+i}, v{ACC+16*w+i}")
    for i in range(0, 16, 2):
        rnd2(g, ACC+i, ACC+i+1, T); silu_rnd(g, ACC+i, ACC+i+1, T)
        g(f"v_cvt_pk_bf16_f32 v{BF+i//2}, v{ACC+i}, v{ACC+i+1}")
    g("s_and_b32 s30, s6, 1"); g("s_lshl_b32 s30, s30, 5"); g("s_add_u32 s30, s30, s7"); g("v_add_u32 v10, s30, v3")
    g("s_movk_i32 s30, 896"); g("v_mul_lo_u32 v10, v10, s30"); g("v_lshl_add_u32 v10, v4, 5, v10")
    g("s_lshr_b32 s30, s6, 1"); g("s_lshl_b32 s30, s30, 6"); g("s_lshl_b32 s33, s5, 7"); g("s_add_u32 s30, s30, s33"); g(f"s_add_u32 s30, s30, {WS_G}")
    g(f"buffer_store_dwordx4 v[{BF}:{BF+3}], v10, s[24:27], s30 offen"); g(f"buffer_store_dwordx4 v[{BF+4}:{BF+7}], v10, s[24:27], s30 offen offset:16")
    g.lab("K2_done"); g("s_endpgm")
    return g.o

def k3():
    g = G()
    ACC = 64; PQF = 96; KVF = 104; BF = 112; OF = 128; T = 160; GX = 176
    OL = 0
    g("s_cmp_ge_u32 s2, 128"); g("s_cbranch_scc1 K3_done")
    g("s_load_dwordx2 s[8:9], s[0:1], 16"); g("s_load_dwordx2 s[12:13], s[0:1], 0"); g("s_load_dwordx2 s[16:17], s[0:1], 56")
    g("s_load_dwordx2 s[24:25], s[0:1], 72")
    consts(g)
    g("v_and_b32 v1, 63, v0"); g("v_lshrrev_b32 v2, 6, v0"); g.nop(); g("v_readfirstlane_b32 s6, v2")
    g("s_waitcnt lgkmcnt(0)")
    srd(g, 8, 2, 448*896); srd(g, 12, 0, 2048*896); srd(g, 16, 7, 2048*896); srd(g, 24, 9, 0x1000000)
    g("s_lshr_b32 s4, s2, 1"); g("s_and_b32 s5, s2, 1"); g("s_lshl_b32 s7, s4, 5")
    g("v_and_b32 v3, 31, v1"); g("v_lshrrev_b32 v4, 5, v1")
    g("v_add_u32 v5, s7, v3"); g("v_lshlrev_b32 v5, 10, v5"); g("v_lshl_add_u32 v5, v4, 5, v5")
    g("v_lshlrev_b32 v8, 5, v1")
    g("v_add_u32 v14, 32, v3"); g("v_lshlrev_b32 v14, 2, v14")
    g("v_lshlrev_b32 v10, 4, v1"); g(f"v_add_u32 v10, {65536}, v10")
    for hh in range(4):
        g("s_lshl_b32 s30, s6, 8"); g(f"s_add_u32 s30, s30, {hh*64}")
        g(f"buffer_load_dwordx4 v[{PQF}:{PQF+3}], v5, s[24:27], s30 offen"); g(f"buffer_load_dwordx4 v[{PQF+4}:{PQF+7}], v5, s[24:27], s30 offen offset:16")
        g("s_lshl_b32 s30, s6, 13"); g(f"s_add_u32 s30, s30, {WS_KV + hh*2048}")
        g(f"buffer_load_dwordx4 v[{KVF}:{KVF+3}], v8, s[24:27], s30 offen"); g(f"buffer_load_dwordx4 v[{KVF+4}:{KVF+7}], v8, s[24:27], s30 offen offset:16")
        for i in range(16): g(f"v_mov_b32 v{ACC+i}, 0")
        g("s_waitcnt vmcnt(0)")
        g(f"v_mfma_f32_32x32x16_bf16 v[{ACC}:{ACC+15}], v[{KVF}:{KVF+3}], v[{PQF}:{PQF+3}], v[{ACC}:{ACC+15}]")
        g(f"v_mfma_f32_32x32x16_bf16 v[{ACC}:{ACC+15}], v[{KVF+4}:{KVF+7}], v[{PQF+4}:{PQF+7}], v[{ACC}:{ACC+15}]")
        g.nop(15); g.nop(3)
        g(f"ds_bpermute_b32 v{T}, v14, v{ACC+12}"); g("s_waitcnt lgkmcnt(0)")
        rnd2(g, T, T+1, T+2); g(f"v_add_f32 v{T}, s91, v{T}"); rnd2(g, T, T+1, T+2)
        g(f"v_rcp_f32 v{T}, v{T}"); g.nop()
        for i in range(0, 16, 2):
            rnd2(g, ACC+i, ACC+i+1, T+2)
            g(f"v_mul_f32 v{ACC+i}, v{ACC+i}, v{T}"); g(f"v_mul_f32 v{ACC+i+1}, v{ACC+i+1}, v{T}")
            g(f"v_cvt_pk_bf16_f32 v{OF+i//2}, v{ACC+i}, v{ACC+i+1}")
        g("v_cmp_eq_u32 vcc, 0, v4"); g.nop(1)
        g(f"v_cndmask_b32 v{OF+6}, 0, v{OF+6}, vcc"); g(f"v_cndmask_b32 v{OF+7}, 0, v{OF+7}, vcc")
        g("s_lshl_b32 s30, s6, 13"); g(f"v_add_u32 v11, s30, v10")
        g(f"ds_write_b128 v11, v[{OF}:{OF+3}] offset:{OL+hh*2048}"); g(f"ds_write_b128 v11, v[{OF+4}:{OF+7}] offset:{OL+hh*2048+1024}")
    g("s_waitcnt lgkmcnt(0)"); g("s_barrier")
    g("v_lshrrev_b32 v6, 5, v1"); g("v_lshlrev_b32 v6, 9, v6")
    g("v_bfe_u32 v7, v1, 2, 2"); g("v_lshl_add_u32 v6, v7, 6, v6")
    g("v_bfe_u32 v7, v1, 4, 1"); g("v_lshl_add_u32 v6, v7, 5, v6")
    g("v_and_b32 v7, 3, v1"); g("v_lshl_add_u32 v6, v7, 3, v6"); g("s_lshl_b32 s31, s6, 14"); g("v_add_u32 v6, s31, v6")
    g("v_bfe_u32 v7, v1, 4, 1"); g("v_lshlrev_b32 v7, 3, v7"); g("v_lshrrev_b32 v9, 5, v1"); g("v_lshl_add_u32 v7, v9, 2, v7")
    g("v_bfe_u32 v9, v1, 2, 2"); g("v_add_u32 v7, v7, v9")
    g("v_add_u32 v12, 16, v7"); g("v_min_u32 v12, 27, v12")
    g("s_movk_i32 s30, 896"); g("v_mul_lo_u32 v7, v7, s30"); g("v_mul_lo_u32 v12, v12, s30")
    g("v_and_b32 v9, 3, v1"); g("v_lshl_add_u32 v7, v9, 4, v7"); g("v_lshl_add_u32 v12, v9, 4, v12")
    g("v_add_u32 v13, s7, v3"); g("s_movk_i32 s30, 896"); g("v_mul_lo_u32 v13, v13, s30")
    for rep in range(2):
        if rep == 1:
            g("s_cmp_eq_u32 s6, 3"); g("s_cbranch_scc1 K3_done")
        g("s_mul_i32 s33, s5, 7"); g("s_add_u32 s33, s33, s6"); g(f"s_add_u32 s33, s33, {4*rep}")
        g("s_lshl_b32 s32, s33, 6")
        for i in range(16): g(f"v_mov_b32 v{ACC+i}, 0")
        P = 6
        def issue(ks):
            g(f"s_add_u32 s30, s31, {(ks%8)*1024}"); g("s_mov_b32 m0, s30")
            g(f"s_add_u32 s30, s32, {(ks//2)*28*896}")
            g(f"buffer_load_dwordx4 v{7 if ks%2==0 else 12}, s[8:11], s30 offen lds")
        for ks in range(P): issue(ks)
        for ks in range(32):
            if ks + P < 32: issue(ks+P)
            g(f"s_waitcnt vmcnt({min(P, 31-ks)})")
            o = (ks%8)*1024
            g(f"ds_read_b64_tr_b16 v[{BF}:{BF+1}], v6 offset:{o}"); g(f"ds_read_b64_tr_b16 v[{BF+2}:{BF+3}], v6 offset:{o+256}")
            g(f"ds_read_b128 v[{BF+4}:{BF+7}], v10 offset:{OL+ks*1024}")
            g("s_waitcnt lgkmcnt(0)")
            g(f"v_mfma_f32_32x32x16_bf16 v[{ACC}:{ACC+15}], v[{BF}:{BF+3}], v[{BF+4}:{BF+7}], v[{ACC}:{ACC+15}]")
        g(f"s_add_u32 s30, s32, {WS_G}"); g("v_lshl_add_u32 v11, v4, 5, v13")
        g(f"buffer_load_dwordx4 v[{GX}:{GX+3}], v11, s[24:27], s30 offen"); g(f"buffer_load_dwordx4 v[{GX+4}:{GX+7}], v11, s[24:27], s30 offen offset:16")
        g("v_lshl_add_u32 v11, v4, 3, v13")
        for q in range(4): g(f"buffer_load_dwordx2 v[{GX+8+2*q}:{GX+9+2*q}], v11, s[12:15], s32 offen offset:{q*16}")
        g.nop(15); g("s_waitcnt vmcnt(0)")
        for i in range(0, 16, 2):
            a, b = ACC+i, ACC+i+1
            rnd2(g, a, b, T)
            g(f"v_lshlrev_b32 v{T}, 16, v{GX+i//2}"); g(f"v_and_b32 v{T+1}, 0xffff0000, v{GX+i//2}")
            g(f"v_mul_f32 v{a}, v{a}, v{T}"); g(f"v_mul_f32 v{b}, v{b}, v{T+1}")
            rnd2(g, a, b, T)
            g(f"v_lshlrev_b32 v{T}, 16, v{GX+8+i//2}"); g(f"v_and_b32 v{T+1}, 0xffff0000, v{GX+8+i//2}")
            g(f"v_add_f32 v{a}, v{a}, v{T}"); g(f"v_add_f32 v{b}, v{b}, v{T+1}")
            g(f"v_cvt_pk_bf16_f32 v{GX+8+i//2}, v{a}, v{b}")
        for q in range(4): g(f"buffer_store_dwordx2 v[{GX+8+2*q}:{GX+9+2*q}], v11, s[16:19], s32 offen offset:{q*16}")
        g("s_waitcnt vmcnt(0)")
    g.lab("K3_done"); g("s_endpgm")
    return g.o

hdr = open(f"cdna_kernels/{NAME}.s.ref").read().split("; Override")[0]
out = hdr
out += "; @launch kernel=k1_kernel grid=(256,1,1) block=(256,1,1) lds=102400\n"
out += "; @launch kernel=k2_kernel grid=(240,1,1) block=(256,1,1) lds=65536\n"
out += "; @launch kernel=k3_kernel grid=(128,1,1) block=(256,1,1) lds=98304\n"
out += '.amdgcn_target "amdgcn-amd-amdhsa--gfx950"\n.text\n'
for nm, f in (("k1_kernel", k1), ("k2_kernel", k2), ("k3_kernel", k3)):
    out += f".globl {nm}\n.p2align 8\n.type {nm},@function\n{nm}:\n" + "\n".join(f()) + "\n"
out += kdesc("k1_kernel", 256) + kdesc("k2_kernel", 256) + kdesc("k3_kernel", 256)
open(f"cdna_kernels/{NAME}.s", "w").write(out)
```

```python
import sys
NAME = "recurrent_scan__linear_attn_block__glu_gated_swiglu__prompt"
WS_PQ = 0x000000; WS_H = 0x200000; WS_KVP = 0xA00000; WS_KV = 0xB00000; WS_G = 0xC00000
L2E = 0x3fb8aa3b
EPS6 = 0x358637bd

class G:
    def __init__(s): s.o = []
    def __call__(s, t): s.o.append("    " + t)
    def lab(s, t): s.o.append(t + ":")
    def nop(s, n=0): s(f"s_nop {n}")

def srd(g, d, slot, nbytes, base_add=0):
    if base_add:
        g(f"s_add_u32 s{d}, s{d}, {base_add}"); g(f"s_addc_u32 s{d+1}, s{d+1}, 0")
    g(f"s_and_b32 s{d+1}, s{d+1}, 0xffff")
    g(f"s_mov_b32 s{d+2}, {nbytes}"); g(f"s_mov_b32 s{d+3}, 0x20000")

def rnd2(g, a, b, t):
    g(f"v_cvt_pk_bf16_f32 v{t}, v{a}, v{b}")
    g(f"v_lshlrev_b32 v{a}, 16, v{t}")
    g(f"v_and_b32 v{b}, 0xffff0000, v{t}")

def phi_pack(g, acc, out, t):
    for i in range(0, 16, 2):
        a, b = acc+i, acc+i+1
        rnd2(g, a, b, t)
        g(f"v_mul_f32 v{t}, s90, v{a}"); g(f"v_mul_f32 v{t+1}, s90, v{b}")
        g(f"v_exp_f32 v{t}, v{t}"); g(f"v_exp_f32 v{t+1}, v{t+1}")
        g(f"v_add_f32 v{t+2}, 1.0, v{a}"); g(f"v_add_f32 v{t+3}, 1.0, v{b}")
        g(f"v_cmp_lt_f32 vcc, 0, v{a}"); g.nop(1)
        g(f"v_cndmask_b32 v{a}, v{t}, v{t+2}, vcc")
        g(f"v_cmp_lt_f32 vcc, 0, v{b}"); g.nop(1)
        g(f"v_cndmask_b32 v{b}, v{t+1}, v{t+3}, vcc")
        rnd2(g, a, b, t)
        g(f"v_add_f32 v{a}, s91, v{a}"); g(f"v_add_f32 v{b}, s91, v{b}")
        g(f"v_cvt_pk_bf16_f32 v{out+i//2}, v{a}, v{b}")

def silu_rnd(g, a, b, t):
    for r, tt in ((a, t), (b, t+1)):
        g(f"v_mul_f32 v{tt}, s92, v{r}")
        g(f"v_exp_f32 v{tt}, v{tt}"); g.nop()
        g(f"v_add_f32 v{tt}, 1.0, v{tt}")
        g(f"v_rcp_f32 v{tt}, v{tt}"); g.nop()
        g(f"v_mul_f32 v{r}, v{r}, v{tt}")
    rnd2(g, a, b, t)

def consts(g):
    g(f"s_mov_b32 s90, {L2E}"); g(f"s_mov_b32 s91, {EPS6}"); g(f"s_mov_b32 s92, {L2E | 0x80000000}")

def kdesc(name, vg, sg=100):
    return f""".section .rodata,"a"
.p2align 6
.amdhsa_kernel {name}
  .amdhsa_next_free_vgpr {vg}
  .amdhsa_next_free_sgpr {sg}
  .amdhsa_accum_offset {vg}
  .amdhsa_group_segment_fixed_size 0
  .amdhsa_kernarg_size 80
  .amdhsa_user_sgpr_count 2
  .amdhsa_user_sgpr_kernarg_segment_ptr 1
  .amdhsa_system_sgpr_workgroup_id_x 1
.end_amdhsa_kernel
"""

def k1():
    g = G()
    A = 16; ACC0 = 128; ACC1 = 144; BF = 192; T = 216; PK = 224; VV = 232; KVA = 240
    SLAB = 28672; RED = 3*SLAB
    g("s_cmp_ge_u32 s2, 256"); g("s_cbranch_scc1 K1_done")
    g("s_load_dwordx2 s[8:9], s[0:1], 0"); g("s_load_dwordx2 s[12:13], s[0:1], 8")
    g("s_load_dwordx2 s[16:17], s[0:1], 32"); g("s_load_dwordx2 s[20:21], s[0:1], 40")
    g("s_load_dwordx2 s[24:25], s[0:1], 72")
    consts(g)
    g("s_lshr_b32 s4, s2, 4"); g("s_and_b32 s5, s2, 15")
    g("v_and_b32 v1, 63, v0"); g("v_lshrrev_b32 v2, 6, v0")
    g.nop(); g("v_readfirstlane_b32 s6, v2")
    g("s_waitcnt lgkmcnt(0)")
    srd(g, 8, 0, 2048*896); srd(g, 12, 1, 448*2688); srd(g, 16, 4, 448*3584); srd(g, 20, 5, 448*3584)
    srd(g, 24, 9, 0x1000000)
    g("s_lshl_b32 s7, s4, 7"); g("s_lshl_b32 s30, s6, 5"); g("s_add_u32 s7, s7, s30")
    g("v_and_b32 v3, 31, v1"); g("v_lshrrev_b32 v4, 5, v1")
    g("v_add_u32 v5, s7, v3"); g("s_movk_i32 s30, 896"); g("v_mul_lo_u32 v5, v5, s30")
    g("v_lshl_add_u32 v5, v4, 4, v5")
    for ks in range(28):
        g(f"buffer_load_dwordx4 v[{A+4*ks}:{A+4*ks+3}], v5, s[8:11], 0 offen offset:{ks*32}")
    g("v_lshrrev_b32 v6, 3, v0"); g("v_and_b32 v7, 7, v0")
    g("s_movk_i32 s30, 2688"); g("v_mul_lo_u32 v8, v6, s30"); g("v_lshl_add_u32 v8, v7, 3, v8")
    g("s_mul_i32 s31, s5, 56")
    g("v_lshrrev_b32 v9, 2, v6"); g("v_lshlrev_b32 v9, 8, v9"); g("v_and_b32 v10, 3, v6")
    g("v_lshl_add_u32 v9, v10, 6, v9"); g("v_lshl_add_u32 v9, v7, 3, v9")
    g("v_cmp_eq_u32 s[32:33], 7, v7")
    ST = 128
    for u in range(3):
        g(f"s_add_u32 s30, s31, {u*896}")
        for it in range(14):
            g(f"s_add_u32 s34, s30, {it*32*2688}")
            g(f"buffer_load_dwordx2 v[{ST+28*u+2*it}:{ST+28*u+2*it+1}], v8, s[12:15], s34 offen")
    g("s_waitcnt vmcnt(42)")
    TT = 216
    AC = TT + 8
    def unpack(r, lo, hi):
        g(f"v_lshlrev_b32 v{lo}, 16, v{r}"); g(f"v_and_b32 v{hi}, 0xffff0000, v{r}")
    def red(dst):
        g(f"v_pk_add_f32 v[{AC}:{AC+1}], v[{AC}:{AC+1}], v[{AC+2}:{AC+3}]"); g(f"v_pk_add_f32 v[{AC+4}:{AC+5}], v[{AC+4}:{AC+5}], v[{AC+6}:{AC+7}]")
        g(f"v_pk_add_f32 v[{AC}:{AC+1}], v[{AC}:{AC+1}], v[{AC+4}:{AC+5}]"); g(f"v_add_f32 v{dst}, v{AC}, v{AC+1}")
    for i in range(8): g(f"v_mov_b32 v{AC+i}, 0")
    for r in range(A, A+112, 4):
        for q in range(4): unpack(r+q, TT+2*q, TT+2*q+1)
        for q in range(4): g(f"v_pk_add_f32 v[{AC+2*q}:{AC+2*q+1}], v[{AC+2*q}:{AC+2*q+1}], v[{TT+2*q}:{TT+2*q+1}]")
    red(12)
    g("v_lshlrev_b32 v14, 2, v1"); g("v_xor_b32 v14, 128, v14")
    g("ds_bpermute_b32 v13, v14, v12"); g("s_waitcnt lgkmcnt(0)")
    g("v_add_f32 v12, v12, v13"); g("v_mul_f32 v12, 0x3b124925, v12")
    g("v_mov_b32 v13, v12")
    for i in range(8): g(f"v_mov_b32 v{AC+i}, 0")
    for r in range(A, A+112, 4):
        for q in range(4): unpack(r+q, TT+2*q, TT+2*q+1)
        for q in range(4): g(f"v_pk_add_f32 v[{TT+2*q}:{TT+2*q+1}], v[{TT+2*q}:{TT+2*q+1}], v[12:13] neg_lo:[0,1] neg_hi:[0,1]")
        for q in range(4): g(f"v_pk_fma_f32 v[{AC+2*q}:{AC+2*q+1}], v[{TT+2*q}:{TT+2*q+1}], v[{TT+2*q}:{TT+2*q+1}], v[{AC+2*q}:{AC+2*q+1}]")
    red(6)
    g("ds_bpermute_b32 v7, v14, v6"); g("s_waitcnt lgkmcnt(0)")
    g("v_add_f32 v6, v6, v7"); g("v_mul_f32 v6, 0x3b124925, v6")
    rnd2(g, 6, 12, 8)
    g("v_add_f32 v6, 0x3727c5ac, v6"); rnd2(g, 6, 7, 8)
    g("v_sqrt_f32 v6, v6"); g.nop(); rnd2(g, 6, 7, 8)
    g("v_rcp_f32 v6, v6"); g.nop(); g("v_mov_b32 v7, v6"); g("v_mov_b32 v13, v12")
    for r in range(A, A+112, 4):
        for q in range(4): unpack(r+q, TT+2*q, TT+2*q+1)
        for q in range(4): g(f"v_pk_add_f32 v[{TT+2*q}:{TT+2*q+1}], v[{TT+2*q}:{TT+2*q+1}], v[12:13] neg_lo:[0,1] neg_hi:[0,1]")
        for q in range(4): g(f"v_cvt_pk_bf16_f32 v{r+q}, v{TT+2*q}, v{TT+2*q+1}")
        for q in range(4): unpack(r+q, TT+2*q, TT+2*q+1)
        for q in range(4): g(f"v_pk_mul_f32 v[{TT+2*q}:{TT+2*q+1}], v[{TT+2*q}:{TT+2*q+1}], v[6:7]")
        for q in range(4): g(f"v_cvt_pk_bf16_f32 v{r+q}, v{TT+2*q}, v{TT+2*q+1}")
    g("s_waitcnt vmcnt(0)")
    for u in range(3):
        for it in range(14):
            rr = ST+28*u+2*it
            g(f"v_cndmask_b32 v{rr}, v{rr}, 0, s[32:33]"); g(f"v_cndmask_b32 v{rr+1}, v{rr+1}, 0, s[32:33]")
            g(f"ds_write_b64 v9, v[{rr}:{rr+1}] offset:{it*2048}")
        g(f"v_add_u32 v9, {SLAB}, v9")
    g("v_lshrrev_b32 v6, 5, v1"); g("v_lshlrev_b32 v6, 9, v6")
    g("v_bfe_u32 v7, v1, 2, 2"); g("v_lshl_add_u32 v6, v7, 6, v6")
    g("v_bfe_u32 v7, v1, 4, 1"); g("v_lshl_add_u32 v6, v7, 5, v6")
    g("v_and_b32 v7, 3, v1"); g("v_lshl_add_u32 v6, v7, 3, v6")
    g("v_lshrrev_b32 v7, 4, v1"); g("v_lshlrev_b32 v7, 2, v7"); g("v_bfe_u32 v8, v1, 2, 2"); g("v_add_u32 v7, v7, v8")
    g("s_movk_i32 s30, 3584"); g("v_mul_lo_u32 v7, v7, s30"); g("v_and_b32 v8, 3, v1"); g("v_lshl_add_u32 v7, v8, 4, v7")
    g("v_add_u32 v8, s7, v3")
    g("v_lshlrev_b32 v9, 10, v8"); g("v_lshl_add_u32 v9, v4, 5, v9"); g("s_lshl_b32 s30, s5, 6"); g("v_add_u32 v9, s30, v9")
    g("s_movk_i32 s30, 3584"); g("v_mul_lo_u32 v15, v8, s30"); g("v_lshl_add_u32 v15, v4, 4, v15")
    g("s_mul_i32 s30, s5, 224"); g(f"s_add_u32 s30, s30, {WS_H}"); g("v_add_u32 v15, s30, v15")
    g("s_mul_i32 s35, s5, 224")
    state = {"out": []}
    def issue_slab(u):
        p, wh = (u-3)//2, (u-3)&1
        sr = 16 if wh == 0 else 20
        for q in range(7):
            g(f"s_mul_i32 s30, s6, {7*1024}"); g(f"s_add_u32 s30, s30, {(u%3)*SLAB + q*1024}"); g("s_mov_b32 m0, s30")
            g(f"s_mul_i32 s30, s6, {7*16*3584}"); g(f"s_add_u32 s30, s30, {q*16*3584 + p*64}"); g("s_add_u32 s30, s30, s35")
            g(f"buffer_load_dwordx4 v7, s[{sr}:{sr+3}], s30 offen lds")
        state["out"].append(("slab", u, 7))
    def wait_slab(u):
        n = 0; found = False
        for it in state["out"]:
            if found: n += it[2]
            if it[0] == "slab" and it[1] == u: found = True
        if found: g(f"s_waitcnt vmcnt({n})")
    D = 4
    NB = 6
    accs = {0:128, 1:160, 2:128, 3:160, 4:176, 5:128, 6:144, 7:160, 8:176, 9:128, 10:144}
    def epilogue(u):
        e = G(); ns = 0
        if u == 0:
            phi_pack(e, accs[0], PK, T)
            e(f"buffer_store_dwordx4 v[{PK}:{PK+3}], v9, s[24:27], 0 offen")
            e(f"buffer_store_dwordx4 v[{PK+4}:{PK+7}], v9, s[24:27], 0 offen offset:16"); e.nop(1); ns = 2
        elif u == 1:
            phi_pack(e, accs[1], PK, T)
            e("v_cmp_gt_u32 vcc, 28, v3"); e.nop(1)
            for i in range(8): e(f"v_cndmask_b32 v{PK+i}, 0, v{PK+i}, vcc")
        elif u == 2:
            ac = accs[2]
            for i in range(8): e(f"v_cvt_pk_bf16_f32 v{VV+i}, v{ac+2*i}, v{ac+2*i+1}")
            e("v_cmp_eq_u32 vcc, 28, v3"); e(f"v_mov_b32 v{T}, 0x3f803f80"); e.nop(1)
            for i in range(8): e(f"v_cndmask_b32 v{VV+i}, v{VV+i}, v{T}, vcc")
            for i in range(16): e(f"v_mov_b32 v{KVA+i}, 0")
            e.nop(1)
            e(f"v_mfma_f32_32x32x16_bf16 v[{KVA}:{KVA+15}], v[{PK}:{PK+3}], v[{VV}:{VV+3}], v[{KVA}:{KVA+15}]")
            e(f"v_mfma_f32_32x32x16_bf16 v[{KVA}:{KVA+15}], v[{PK+4}:{PK+7}], v[{VV+4}:{VV+7}], v[{KVA}:{KVA+15}]")
            e.nop(15); e.nop(3)
            e("v_lshlrev_b32 v10, 4, v1"); e("s_lshl_b32 s36, s6, 12"); e(f"s_add_u32 s36, s36, {RED}"); e("v_add_u32 v10, s36, v10")
            for q in range(4): e(f"ds_write_b128 v10, v[{KVA+4*q}:{KVA+4*q+3}] offset:{q*1024}")
            e("s_waitcnt lgkmcnt(0)"); e("s_barrier")
            e("v_lshlrev_b32 v10, 4, v1"); e("s_lshl_b32 s36, s6, 10"); e(f"s_add_u32 s36, s36, {RED}"); e("v_add_u32 v10, s36, v10")
            for w in range(4): e(f"ds_read_b128 v[{KVA+4*w}:{KVA+4*w+3}], v10 offset:{w*4096}")
            e("s_waitcnt lgkmcnt(0)")
            for w in range(1, 4):
                for i in range(4): e(f"v_add_f32 v{KVA+i}, v{KVA+i}, v{KVA+4*w+i}")
            e("v_lshlrev_b32 v10, 6, v1"); e("s_lshl_b32 s36, s4, 16"); e("s_lshl_b32 s37, s5, 12"); e("s_add_u32 s36, s36, s37")
            e("s_lshl_b32 s37, s6, 4"); e("s_add_u32 s36, s36, s37"); e(f"s_add_u32 s36, s36, {WS_KVP}")
            e(f"buffer_store_dwordx4 v[{KVA}:{KVA+3}], v10, s[24:27], s36 offen"); e.nop(1); ns = 1
        else:
            p = (u-3)//2; G0, G1 = accs[u-1], accs[u]
            for i in range(0, 16, 2):
                a, b = G0+i, G0+i+1; c, d = G1+i, G1+i+1
                rnd2(e, a, b, T); rnd2(e, c, d, T); silu_rnd(e, a, b, T)
                e(f"v_mul_f32 v{a}, v{a}, v{c}"); e(f"v_mul_f32 v{b}, v{b}, v{d}")
                e(f"v_cvt_pk_bf16_f32 v{PK+i//2}, v{a}, v{b}")
            e(f"buffer_store_dwordx4 v[{PK}:{PK+3}], v15, s[24:27], 0 offen offset:{p*64}"); ns = 1
            if p < 3:
                e(f"buffer_store_dwordx4 v[{PK+4}:{PK+7}], v15, s[24:27], 0 offen offset:{p*64+32}"); ns = 2
            e.nop(1)
        return e.o, ns
    pend = []; pend_ns = 0
    for u in range(11):
        wait_slab(u)
        g("s_waitcnt lgkmcnt(0)"); g("s_barrier")
        if 3 <= u+2 <= 10: issue_slab(u+2)
        acc = accs[u]
        for i in range(16): g(f"v_mov_b32 v{acc+i}, 0")
        g(f"v_add_u32 v2, {(u%3)*SLAB}, v6")
        def rd(ks):
            b = BF + 4*(ks % NB)
            g(f"ds_read_b64_tr_b16 v[{b}:{b+1}], v2 offset:{ks*1024}")
            g(f"ds_read_b64_tr_b16 v[{b+2}:{b+3}], v2 offset:{ks*1024+256}")
        for ks in range(D): rd(ks)
        nslots = 28 if u < 3 or (u-3)&1 else 56
        per = -(-len(pend) // nslots) if pend else 0
        for ks in range(28):
            if ks + D < 28: rd(ks+D)
            g(f"s_waitcnt lgkmcnt({2*min(D, 27-ks)})")
            b = BF + 4*(ks % NB); a = A + 4*ks
            if u == 0 or u >= 3:
                g(f"v_mfma_f32_32x32x16_bf16 v[{acc}:{acc+15}], v[{b}:{b+3}], v[{a}:{a+3}], v[{acc}:{acc+15}]")
            else:
                g(f"v_mfma_f32_32x32x16_bf16 v[{acc}:{acc+15}], v[{a}:{a+3}], v[{b}:{b+3}], v[{acc}:{acc+15}]")
            if ks >= 1:
                chunk, pend = pend[:per], pend[per:]
                for l in chunk:
                    g.o.append(l)
                    if "buffer_store" in l: state["out"].append(("st", u, 1))
        if u < 3 or (u-3)&1:
            for l in pend:
                g.o.append(l)
                if "buffer_store" in l: state["out"].append(("st", u, 1))
            pend, _ = epilogue(u)
    g.nop(15); g.nop(3)
    g.o += pend
    g.lab("K1_done"); g("s_endpgm")
    return g.o

def k2():
    g = G()
    ACC = 64; HF = 128; BF = 192; T = 224
    g("s_cmp_ge_u32 s2, 240"); g("s_cbranch_scc1 K2_done")
    g("s_load_dwordx2 s[8:9], s[0:1], 48"); g("s_load_dwordx2 s[24:25], s[0:1], 72")
    consts(g)
    g("v_and_b32 v1, 63, v0"); g("v_lshrrev_b32 v2, 6, v0"); g.nop(); g("v_readfirstlane_b32 s6, v2")
    g("s_waitcnt lgkmcnt(0)")
    srd(g, 8, 6, 1792*896); srd(g, 24, 9, 0x1000000)
    g("s_cmp_lt_u32 s2, 224"); g("s_cbranch_scc1 K2_gemm")
    g("s_cmp_lg_u32 s6, 0"); g("s_cbranch_scc1 K2_done")
    g("s_sub_u32 s4, s2, 224"); g("v_lshlrev_b32 v3, 6, v1")
    for i in range(16): g(f"v_mov_b32 v{16+i}, 0")
    for rb in range(16):
        g("s_lshl_b32 s30, s4, 12"); g(f"s_add_u32 s30, s30, {WS_KVP + rb*65536}")
        for q in range(4): g(f"buffer_load_dwordx4 v[{32+4*q}:{35+4*q}], v3, s[24:27], s30 offen offset:{q*16}")
        g("s_waitcnt vmcnt(0)")
        for i in range(16): g(f"v_add_f32 v{16+i}, v{16+i}, v{32+i}")
    for i in range(8): g(f"v_cvt_pk_bf16_f32 v{48+i}, v{16+2*i}, v{17+2*i}")
    g("v_lshlrev_b32 v3, 5, v1"); g("s_lshl_b32 s30, s4, 11"); g(f"s_add_u32 s30, s30, {WS_KV}")
    g("buffer_store_dwordx4 v[48:51], v3, s[24:27], s30 offen"); g("buffer_store_dwordx4 v[52:55], v3, s[24:27], s30 offen offset:16")
    g("s_branch K2_done")
    g.lab("K2_gemm")
    g("s_and_b32 s4, s2, 31"); g("s_lshr_b32 s5, s2, 5")
    g("v_and_b32 v3, 31, v1"); g("v_lshrrev_b32 v4, 5, v1")
    g("s_lshl_b32 s7, s4, 6"); g("v_add_u32 v5, s7, v3"); g("s_movk_i32 s30, 3584"); g("v_mul_lo_u32 v5, v5, s30")
    g("v_lshl_add_u32 v5, v4, 4, v5"); g("s_mul_i32 s30, s6, 896"); g(f"s_add_u32 s30, s30, {WS_H}"); g("v_add_u32 v5, s30, v5")
    g(f"v_add_u32 v8, {32*3584}, v5")
    g("v_lshrrev_b32 v6, 5, v1"); g("v_lshlrev_b32 v6, 9, v6")
    g("v_bfe_u32 v7, v1, 2, 2"); g("v_lshl_add_u32 v6, v7, 6, v6")
    g("v_bfe_u32 v7, v1, 4, 1"); g("v_lshl_add_u32 v6, v7, 5, v6")
    g("v_and_b32 v7, 3, v1"); g("v_lshl_add_u32 v6, v7, 3, v6"); g("s_lshl_b32 s31, s6, 14"); g("v_add_u32 v6, s31, v6")
    g("v_bfe_u32 v7, v1, 4, 1"); g("v_lshlrev_b32 v7, 3, v7"); g("v_lshrrev_b32 v9, 5, v1"); g("v_lshl_add_u32 v7, v9, 2, v7")
    g("v_bfe_u32 v9, v1, 2, 2"); g("v_add_u32 v7, v7, v9"); g("s_movk_i32 s30, 896"); g("v_mul_lo_u32 v7, v7, s30")
    g("v_and_b32 v9, 3, v1"); g("v_lshl_add_u32 v7, v9, 4, v7")
    g("s_mul_i32 s32, s6, {}".format(28*16*896)); g("s_lshl_b32 s30, s5, 7"); g("s_add_u32 s32, s32, s30")
    for i in range(64): g(f"v_mov_b32 v{ACC+i}, 0")
    P = 6
    def issue(ks):
        for un in range(2):
            g(f"s_add_u32 s30, s31, {(ks%8)*2048 + un*1024}"); g("s_mov_b32 m0, s30")
            g(f"s_add_u32 s30, s32, {ks*16*896 + un*64}")
            g(f"buffer_load_dwordx4 v7, s[8:11], s30 offen lds")
        h = HF + 8*(ks % 8)
        g(f"buffer_load_dwordx4 v[{h}:{h+3}], v5, s[24:27], 0 offen offset:{ks*32}")
        g(f"buffer_load_dwordx4 v[{h+4}:{h+7}], v8, s[24:27], 0 offen offset:{ks*32}")
    for ks in range(P): issue(ks)
    for ks in range(28):
        if ks + P < 28: issue(ks+P)
        g(f"s_waitcnt vmcnt({4*min(P, 27-ks)})")
        o = (ks%8)*2048
        for un in range(2):
            g(f"ds_read_b64_tr_b16 v[{BF+4*un}:{BF+4*un+1}], v6 offset:{o+un*1024}")
            g(f"ds_read_b64_tr_b16 v[{BF+4*un+2}:{BF+4*un+3}], v6 offset:{o+un*1024+256}")
        g("s_waitcnt lgkmcnt(0)")
        h = HF + 8*(ks % 8)
        for un in range(2):
            for t in range(2):
                a = ACC + 16*(2*un+t)
                g(f"v_mfma_f32_32x32x16_bf16 v[{a}:{a+15}], v[{BF+4*un}:{BF+4*un+3}], v[{h+4*t}:{h+4*t+3}], v[{a}:{a+15}]")
    g.nop(15); g.nop(3)
    g("s_barrier")
    g("v_lshlrev_b32 v10, 4, v1"); g("s_lshl_b32 s30, s6, 14"); g("v_add_u32 v10, s30, v10")
    for q in range(16): g(f"ds_write_b128 v10, v[{ACC+4*q}:{ACC+4*q+3}] offset:{q*1024}")
    g("s_waitcnt lgkmcnt(0)"); g("s_barrier")
    g("v_lshlrev_b32 v10, 4, v1"); g("s_lshl_b32 s30, s6, 12"); g("v_add_u32 v10, s30, v10")
    for w in range(4):
        for q in range(4): g(f"ds_read_b128 v[{ACC+16*w+4*q}:{ACC+16*w+4*q+3}], v10 offset:{w*16384+q*1024}")
    g("s_waitcnt lgkmcnt(0)")
    for w in range(1, 4):
        for i in range(16): g(f"v_add_f32 v{ACC+i}, v{ACC+i}, v{ACC+16*w+i}")
    for i in range(0, 16, 2):
        rnd2(g, ACC+i, ACC+i+1, T); silu_rnd(g, ACC+i, ACC+i+1, T)
        g(f"v_cvt_pk_bf16_f32 v{BF+i//2}, v{ACC+i}, v{ACC+i+1}")
    g("s_and_b32 s30, s6, 1"); g("s_lshl_b32 s30, s30, 5"); g("s_add_u32 s30, s30, s7"); g("v_add_u32 v10, s30, v3")
    g("s_movk_i32 s30, 896"); g("v_mul_lo_u32 v10, v10, s30"); g("v_lshl_add_u32 v10, v4, 5, v10")
    g("s_lshr_b32 s30, s6, 1"); g("s_lshl_b32 s30, s30, 6"); g("s_lshl_b32 s33, s5, 7"); g("s_add_u32 s30, s30, s33"); g(f"s_add_u32 s30, s30, {WS_G}")
    g(f"buffer_store_dwordx4 v[{BF}:{BF+3}], v10, s[24:27], s30 offen"); g(f"buffer_store_dwordx4 v[{BF+4}:{BF+7}], v10, s[24:27], s30 offen offset:16")
    g.lab("K2_done"); g("s_endpgm")
    return g.o

def k3():
    g = G()
    ACC = 64; PQF = 96; KVF = 104; BF = 112; OF = 128; T = 160; GX = 176
    OL = 0
    g("s_cmp_ge_u32 s2, 128"); g("s_cbranch_scc1 K3_done")
    g("s_load_dwordx2 s[8:9], s[0:1], 16"); g("s_load_dwordx2 s[12:13], s[0:1], 0"); g("s_load_dwordx2 s[16:17], s[0:1], 56")
    g("s_load_dwordx2 s[24:25], s[0:1], 72")
    consts(g)
    g("v_and_b32 v1, 63, v0"); g("v_lshrrev_b32 v2, 6, v0"); g.nop(); g("v_readfirstlane_b32 s6, v2")
    g("s_waitcnt lgkmcnt(0)")
    srd(g, 8, 2, 448*896); srd(g, 12, 0, 2048*896); srd(g, 16, 7, 2048*896); srd(g, 24, 9, 0x1000000)
    g("s_and_b32 s4, s2, 63"); g("s_lshr_b32 s5, s2, 6"); g("s_lshl_b32 s7, s4, 5")
    g("v_and_b32 v3, 31, v1"); g("v_lshrrev_b32 v4, 5, v1")
    g("v_add_u32 v5, s7, v3"); g("v_lshlrev_b32 v5, 10, v5"); g("v_lshl_add_u32 v5, v4, 5, v5")
    g("v_lshlrev_b32 v8, 5, v1")
    g("v_add_u32 v14, 32, v3"); g("v_lshlrev_b32 v14, 2, v14")
    g("v_lshlrev_b32 v10, 4, v1"); g(f"v_add_u32 v10, {65536}, v10")
    for hh in range(4):
        g("s_lshl_b32 s30, s6, 8"); g(f"s_add_u32 s30, s30, {hh*64}")
        g(f"buffer_load_dwordx4 v[{PQF}:{PQF+3}], v5, s[24:27], s30 offen"); g(f"buffer_load_dwordx4 v[{PQF+4}:{PQF+7}], v5, s[24:27], s30 offen offset:16")
        g("s_lshl_b32 s30, s6, 13"); g(f"s_add_u32 s30, s30, {WS_KV + hh*2048}")
        g(f"buffer_load_dwordx4 v[{KVF}:{KVF+3}], v8, s[24:27], s30 offen"); g(f"buffer_load_dwordx4 v[{KVF+4}:{KVF+7}], v8, s[24:27], s30 offen offset:16")
        for i in range(16): g(f"v_mov_b32 v{ACC+i}, 0")
        g("s_waitcnt vmcnt(0)")
        g(f"v_mfma_f32_32x32x16_bf16 v[{ACC}:{ACC+15}], v[{KVF}:{KVF+3}], v[{PQF}:{PQF+3}], v[{ACC}:{ACC+15}]")
        g(f"v_mfma_f32_32x32x16_bf16 v[{ACC}:{ACC+15}], v[{KVF+4}:{KVF+7}], v[{PQF+4}:{PQF+7}], v[{ACC}:{ACC+15}]")
        g.nop(15); g.nop(3)
        g(f"ds_bpermute_b32 v{T}, v14, v{ACC+12}"); g("s_waitcnt lgkmcnt(0)")
        rnd2(g, T, T+1, T+2); g(f"v_add_f32 v{T}, s91, v{T}"); rnd2(g, T, T+1, T+2)
        g(f"v_rcp_f32 v{T}, v{T}"); g.nop()
        for i in range(0, 16, 2):
            rnd2(g, ACC+i, ACC+i+1, T+2)
            g(f"v_mul_f32 v{ACC+i}, v{ACC+i}, v{T}"); g(f"v_mul_f32 v{ACC+i+1}, v{ACC+i+1}, v{T}")
            g(f"v_cvt_pk_bf16_f32 v{OF+i//2}, v{ACC+i}, v{ACC+i+1}")
        g("v_cmp_eq_u32 vcc, 0, v4"); g.nop(1)
        g(f"v_cndmask_b32 v{OF+6}, 0, v{OF+6}, vcc"); g(f"v_cndmask_b32 v{OF+7}, 0, v{OF+7}, vcc")
        g("s_lshl_b32 s30, s6, 13"); g(f"v_add_u32 v11, s30, v10")
        g(f"ds_write_b128 v11, v[{OF}:{OF+3}] offset:{OL+hh*2048}"); g(f"ds_write_b128 v11, v[{OF+4}:{OF+7}] offset:{OL+hh*2048+1024}")
    g("s_waitcnt lgkmcnt(0)"); g("s_barrier")
    g("v_lshrrev_b32 v6, 5, v1"); g("v_lshlrev_b32 v6, 9, v6")
    g("v_bfe_u32 v7, v1, 2, 2"); g("v_lshl_add_u32 v6, v7, 6, v6")
    g("v_bfe_u32 v7, v1, 4, 1"); g("v_lshl_add_u32 v6, v7, 5, v6")
    g("v_and_b32 v7, 3, v1"); g("v_lshl_add_u32 v6, v7, 3, v6"); g("s_lshl_b32 s31, s6, 14"); g("v_add_u32 v6, s31, v6")
    g("v_bfe_u32 v7, v1, 4, 1"); g("v_lshlrev_b32 v7, 3, v7"); g("v_lshrrev_b32 v9, 5, v1"); g("v_lshl_add_u32 v7, v9, 2, v7")
    g("v_bfe_u32 v9, v1, 2, 2"); g("v_add_u32 v7, v7, v9")
    g("v_add_u32 v12, 16, v7"); g("v_min_u32 v12, 27, v12")
    g("s_movk_i32 s30, 896"); g("v_mul_lo_u32 v7, v7, s30"); g("v_mul_lo_u32 v12, v12, s30")
    g("v_and_b32 v9, 3, v1"); g("v_lshl_add_u32 v7, v9, 4, v7"); g("v_lshl_add_u32 v12, v9, 4, v12")
    g("v_add_u32 v13, s7, v3"); g("s_movk_i32 s30, 896"); g("v_mul_lo_u32 v13, v13, s30")
    for rep in range(2):
        if rep == 1:
            g("s_cmp_eq_u32 s6, 3"); g("s_cbranch_scc1 K3_done")
        g("s_mul_i32 s33, s5, 7"); g("s_add_u32 s33, s33, s6"); g(f"s_add_u32 s33, s33, {4*rep}")
        g("s_lshl_b32 s32, s33, 6")
        for i in range(16): g(f"v_mov_b32 v{ACC+i}, 0")
        P = 6
        def issue(ks):
            g(f"s_add_u32 s30, s31, {(ks%8)*1024}"); g("s_mov_b32 m0, s30")
            g(f"s_add_u32 s30, s32, {(ks//2)*28*896}")
            g(f"buffer_load_dwordx4 v{7 if ks%2==0 else 12}, s[8:11], s30 offen lds")
        for ks in range(P): issue(ks)
        for ks in range(32):
            if ks + P < 32: issue(ks+P)
            g(f"s_waitcnt vmcnt({min(P, 31-ks)})")
            o = (ks%8)*1024
            g(f"ds_read_b64_tr_b16 v[{BF}:{BF+1}], v6 offset:{o}"); g(f"ds_read_b64_tr_b16 v[{BF+2}:{BF+3}], v6 offset:{o+256}")
            g(f"ds_read_b128 v[{BF+4}:{BF+7}], v10 offset:{OL+ks*1024}")
            g("s_waitcnt lgkmcnt(0)")
            g(f"v_mfma_f32_32x32x16_bf16 v[{ACC}:{ACC+15}], v[{BF}:{BF+3}], v[{BF+4}:{BF+7}], v[{ACC}:{ACC+15}]")
        g(f"s_add_u32 s30, s32, {WS_G}"); g("v_lshl_add_u32 v11, v4, 5, v13")
        g(f"buffer_load_dwordx4 v[{GX}:{GX+3}], v11, s[24:27], s30 offen"); g(f"buffer_load_dwordx4 v[{GX+4}:{GX+7}], v11, s[24:27], s30 offen offset:16")
        g("v_lshl_add_u32 v11, v4, 3, v13")
        for q in range(4): g(f"buffer_load_dwordx2 v[{GX+8+2*q}:{GX+9+2*q}], v11, s[12:15], s32 offen offset:{q*16}")
        g.nop(15); g("s_waitcnt vmcnt(0)")
        for i in range(0, 16, 2):
            a, b = ACC+i, ACC+i+1
            rnd2(g, a, b, T)
            g(f"v_lshlrev_b32 v{T}, 16, v{GX+i//2}"); g(f"v_and_b32 v{T+1}, 0xffff0000, v{GX+i//2}")
            g(f"v_mul_f32 v{a}, v{a}, v{T}"); g(f"v_mul_f32 v{b}, v{b}, v{T+1}")
            rnd2(g, a, b, T)
            g(f"v_lshlrev_b32 v{T}, 16, v{GX+8+i//2}"); g(f"v_and_b32 v{T+1}, 0xffff0000, v{GX+8+i//2}")
            g(f"v_add_f32 v{a}, v{a}, v{T}"); g(f"v_add_f32 v{b}, v{b}, v{T+1}")
            g(f"v_cvt_pk_bf16_f32 v{GX+8+i//2}, v{a}, v{b}")
        for q in range(4): g(f"buffer_store_dwordx2 v[{GX+8+2*q}:{GX+9+2*q}], v11, s[16:19], s32 offen offset:{q*16}")
        g("s_waitcnt vmcnt(0)")
    g.lab("K3_done"); g("s_endpgm")
    return g.o

hdr = open(f"cdna_kernels/{NAME}.s.ref").read().split("; Override")[0]
out = hdr
out += "; @launch kernel=k1_kernel grid=(256,1,1) block=(256,1,1) lds=102400\n"
out += "; @launch kernel=k2_kernel grid=(240,1,1) block=(256,1,1) lds=65536\n"
out += "; @launch kernel=k3_kernel grid=(128,1,1) block=(256,1,1) lds=98304\n"
out += '.amdgcn_target "amdgcn-amd-amdhsa--gfx950"\n.text\n'
for nm, f in (("k1_kernel", k1), ("k2_kernel", k2), ("k3_kernel", k3)):
    out += f".globl {nm}\n.p2align 8\n.type {nm},@function\n{nm}:\n" + "\n".join(f()) + "\n"
out += kdesc("k1_kernel", 256) + kdesc("k2_kernel", 256) + kdesc("k3_kernel", 256)
open(f"cdna_kernels/{NAME}.s", "w").write(out)
```

```python
import sys
NAME = "recurrent_scan__linear_attn_block__glu_gated_swiglu__prompt"
WS_PQ = 0x000000; WS_H = 0x200000; WS_KVP = 0xA00000; WS_KV = 0xB00000; WS_G = 0xC00000
L2E = 0x3fb8aa3b
EPS6 = 0x358637bd

class G:
    def __init__(s): s.o = []
    def __call__(s, t): s.o.append("    " + t)
    def lab(s, t): s.o.append(t + ":")
    def nop(s, n=0): s(f"s_nop {n}")

def srd(g, d, slot, nbytes, base_add=0):
    if base_add:
        g(f"s_add_u32 s{d}, s{d}, {base_add}"); g(f"s_addc_u32 s{d+1}, s{d+1}, 0")
    g(f"s_and_b32 s{d+1}, s{d+1}, 0xffff")
    g(f"s_mov_b32 s{d+2}, {nbytes}"); g(f"s_mov_b32 s{d+3}, 0x20000")

def rnd2(g, a, b, t):
    g(f"v_cvt_pk_bf16_f32 v{t}, v{a}, v{b}")
    g(f"v_lshlrev_b32 v{a}, 16, v{t}")
    g(f"v_and_b32 v{b}, 0xffff0000, v{t}")

def phi_pack(g, acc, out, t):
    for i in range(0, 16, 2):
        a, b = acc+i, acc+i+1
        rnd2(g, a, b, t)
        g(f"v_mul_f32 v{t}, s90, v{a}"); g(f"v_mul_f32 v{t+1}, s90, v{b}")
        g(f"v_exp_f32 v{t}, v{t}"); g(f"v_exp_f32 v{t+1}, v{t+1}")
        g(f"v_add_f32 v{t+2}, 1.0, v{a}"); g(f"v_add_f32 v{t+3}, 1.0, v{b}")
        g(f"v_cmp_lt_f32 vcc, 0, v{a}"); g.nop(1)
        g(f"v_cndmask_b32 v{a}, v{t}, v{t+2}, vcc")
        g(f"v_cmp_lt_f32 vcc, 0, v{b}"); g.nop(1)
        g(f"v_cndmask_b32 v{b}, v{t+1}, v{t+3}, vcc")
        rnd2(g, a, b, t)
        g(f"v_add_f32 v{a}, s91, v{a}"); g(f"v_add_f32 v{b}, s91, v{b}")
        g(f"v_cvt_pk_bf16_f32 v{out+i//2}, v{a}, v{b}")

def silu_rnd(g, a, b, t):
    for r, tt in ((a, t), (b, t+1)):
        g(f"v_mul_f32 v{tt}, s92, v{r}")
        g(f"v_exp_f32 v{tt}, v{tt}"); g.nop()
        g(f"v_add_f32 v{tt}, 1.0, v{tt}")
        g(f"v_rcp_f32 v{tt}, v{tt}"); g.nop()
        g(f"v_mul_f32 v{r}, v{r}, v{tt}")
    rnd2(g, a, b, t)

def consts(g):
    g(f"s_mov_b32 s90, {L2E}"); g(f"s_mov_b32 s91, {EPS6}"); g(f"s_mov_b32 s92, {L2E | 0x80000000}")

def kdesc(name, vg, sg=100):
    return f""".section .rodata,"a"
.p2align 6
.amdhsa_kernel {name}
  .amdhsa_next_free_vgpr {vg}
  .amdhsa_next_free_sgpr {sg}
  .amdhsa_accum_offset {vg}
  .amdhsa_group_segment_fixed_size 0
  .amdhsa_kernarg_size 80
  .amdhsa_user_sgpr_count 2
  .amdhsa_user_sgpr_kernarg_segment_ptr 1
  .amdhsa_system_sgpr_workgroup_id_x 1
.end_amdhsa_kernel
"""

WS_XN = 0xE00000
def k0():
    g = G()
    g("s_cmp_ge_u32 s2, 512"); g("s_cbranch_scc1 K0_done")
    g("s_load_dwordx2 s[8:9], s[0:1], 0"); g("s_load_dwordx2 s[24:25], s[0:1], 72")
    g("v_and_b32 v1, 63, v0"); g("v_lshrrev_b32 v2, 6, v0"); g.nop(); g("v_readfirstlane_b32 s6, v2")
    g("s_waitcnt lgkmcnt(0)")
    srd(g, 8, 0, 2048*896); srd(g, 24, 9, 0x1000000)
    g("s_lshl_b32 s4, s2, 2"); g("s_add_u32 s4, s4, s6")
    g("s_mul_i32 s5, s4, 896"); g("v_lshlrev_b32 v3, 4, v1")
    g("v_cmp_gt_u32 s[32:33], 56, v1")
    g("v_min_u32 v3, 880, v3")
    g("buffer_load_dwordx4 v[4:7], v3, s[8:11], s5 offen")
    g("s_waitcnt vmcnt(0)")
    for q in range(4): g(f"v_cndmask_b32 v{4+q}, 0, v{4+q}, s[32:33]")
    for q in range(4):
        g(f"v_lshlrev_b32 v{8+2*q}, 16, v{4+q}"); g(f"v_and_b32 v{9+2*q}, 0xffff0000, v{4+q}")
    def wavesum(r):
        for m in (1, 2, 4, 8, 16):
            g(f"ds_swizzle_b32 v20, v{r} offset:{(m<<10)|0x1f}"); g("s_waitcnt lgkmcnt(0)"); g(f"v_add_f32 v{r}, v{r}, v20")
        g(f"ds_bpermute_b32 v20, v21, v{r}"); g("s_waitcnt lgkmcnt(0)"); g(f"v_add_f32 v{r}, v{r}, v20")
    g("v_lshlrev_b32 v21, 2, v1"); g("v_xor_b32 v21, 128, v21")
    g("v_pk_add_f32 v[16:17], v[8:9], v[10:11]"); g("v_pk_add_f32 v[18:19], v[12:13], v[14:15]")
    g("v_pk_add_f32 v[16:17], v[16:17], v[18:19]"); g("v_add_f32 v16, v16, v17")
    wavesum(16)
    g("v_mul_f32 v16, 0x3b124925, v16"); g("v_mov_b32 v17, v16")
    for q in range(4): g(f"v_pk_add_f32 v[{24+2*q}:{25+2*q}], v[{8+2*q}:{9+2*q}], v[16:17] neg_lo:[0,1] neg_hi:[0,1]")
    g("v_pk_mul_f32 v[18:19], v[24:25], v[24:25]")
    for q in range(1, 4): g(f"v_pk_fma_f32 v[18:19], v[{24+2*q}:{25+2*q}], v[{24+2*q}:{25+2*q}], v[18:19]")
    g("v_add_f32 v18, v18, v19"); g("v_cndmask_b32 v18, 0, v18, s[32:33]")
    wavesum(18)
    g("v_mul_f32 v18, 0x3b124925, v18")
    rnd2(g, 18, 16, 22)
    g("v_add_f32 v18, 0x3727c5ac, v18"); rnd2(g, 18, 19, 22)
    g("v_sqrt_f32 v18, v18"); g.nop(); rnd2(g, 18, 19, 22)
    g("v_rcp_f32 v18, v18"); g.nop(); g("v_mov_b32 v19, v18"); g("v_mov_b32 v17, v16")
    for q in range(4):
        g(f"v_pk_add_f32 v[{8+2*q}:{9+2*q}], v[{8+2*q}:{9+2*q}], v[16:17] neg_lo:[0,1] neg_hi:[0,1]")
        g(f"v_cvt_pk_bf16_f32 v{4+q}, v{8+2*q}, v{9+2*q}")
        g(f"v_lshlrev_b32 v{8+2*q}, 16, v{4+q}"); g(f"v_and_b32 v{9+2*q}, 0xffff0000, v{4+q}")
        g(f"v_pk_mul_f32 v[{8+2*q}:{9+2*q}], v[{8+2*q}:{9+2*q}], v[18:19]")
        g(f"v_cvt_pk_bf16_f32 v{4+q}, v{8+2*q}, v{9+2*q}")
    g("v_lshrrev_b32 v3, 1, v1"); g("v_lshlrev_b32 v3, 10, v3"); g("v_and_b32 v2, 1, v1"); g("v_lshl_add_u32 v3, v2, 9, v3")
    g("s_lshr_b32 s30, s4, 5"); g("s_mul_i32 s30, s30, 28672"); g("s_and_b32 s31, s4, 31"); g("s_lshl_b32 s31, s31, 4")
    g("s_add_u32 s30, s30, s31"); g(f"s_add_u32 s30, s30, {WS_XN}")
    g("s_and_saveexec_b64 s[34:35], s[32:33]")
    g("buffer_store_dwordx4 v[4:7], v3, s[24:27], s30 offen")
    g.lab("K0_done"); g("s_endpgm")
    return g.o

def k1():
    g = G()
    A = 16; BF = 192; T = 216; PK = 224; VV = 232; KVA = 240
    SLAB = 28672; RED = 2*SLAB
    g("s_cmp_ge_u32 s2, 512"); g("s_cbranch_scc1 K1_done")
    g("s_load_dwordx2 s[12:13], s[0:1], 8")
    g("s_load_dwordx2 s[16:17], s[0:1], 32"); g("s_load_dwordx2 s[20:21], s[0:1], 40")
    g("s_load_dwordx2 s[24:25], s[0:1], 72")
    consts(g)
    g("s_bfe_u32 s4, s2, 0x40004"); g("s_and_b32 s5, s2, 15")
    g("v_and_b32 v1, 63, v0"); g("v_lshrrev_b32 v2, 6, v0")
    g.nop(); g("v_readfirstlane_b32 s6, v2")
    g("s_waitcnt lgkmcnt(0)")
    srd(g, 12, 1, 448*2688); srd(g, 16, 4, 448*3584); srd(g, 20, 5, 448*3584); srd(g, 24, 9, 0x1000000)
    g("s_lshl_b32 s7, s4, 7"); g("s_lshl_b32 s30, s6, 5"); g("s_add_u32 s7, s7, s30")
    g("v_and_b32 v3, 31, v1"); g("v_lshrrev_b32 v4, 5, v1")
    g("v_lshlrev_b32 v5, 4, v1")
    g("s_lshr_b32 s30, s7, 5"); g("s_mul_i32 s30, s30, 28672"); g(f"s_add_u32 s30, s30, {WS_XN}")
    for k4 in range(7):
        for q in range(4):
            ks = 4*k4+q
            g(f"buffer_load_dwordx4 v[{A+4*ks}:{A+4*ks+3}], v5, s[24:27], s30 offen offset:{q*1024}")
        g("s_add_u32 s30, s30, 4096")
    g("v_lshrrev_b32 v6, 5, v1"); g("v_lshlrev_b32 v6, 9, v6")
    g("v_bfe_u32 v7, v1, 2, 2"); g("v_lshl_add_u32 v6, v7, 6, v6")
    g("v_bfe_u32 v7, v1, 4, 1"); g("v_lshl_add_u32 v6, v7, 5, v6")
    g("v_and_b32 v7, 3, v1"); g("v_lshl_add_u32 v6, v7, 3, v6")
    g("v_lshrrev_b32 v7, 4, v1"); g("v_lshlrev_b32 v7, 2, v7"); g("v_bfe_u32 v8, v1, 2, 2"); g("v_add_u32 v7, v7, v8")
    g("s_movk_i32 s30, 3584"); g("v_mul_lo_u32 v7, v7, s30"); g("v_and_b32 v8, 3, v1"); g("v_lshl_add_u32 v7, v8, 4, v7")
    g("v_add_u32 v8, s7, v3")
    g("v_lshlrev_b32 v9, 10, v8"); g("v_lshl_add_u32 v9, v4, 5, v9"); g("s_lshl_b32 s30, s5, 6"); g("v_add_u32 v9, s30, v9")
    g("s_movk_i32 s30, 3584"); g("v_mul_lo_u32 v15, v8, s30"); g("v_lshl_add_u32 v15, v4, 4, v15")
    g("s_mul_i32 s30, s5, 224"); g(f"s_add_u32 s30, s30, {WS_H}"); g("v_add_u32 v15, s30, v15")
    g("s_mul_i32 s35, s5, 224")
    g("s_cmp_ge_u32 s2, 256"); g("s_cbranch_scc1 K1_typeB")
    accs = {0:128, 1:160, 2:128, 3:160, 4:176, 5:128, 6:144, 7:160, 8:176, 9:128, 10:144}
    def path(units):
        state = {"out": [("a", -1, 28)]}
        pos = {u: i for i, u in enumerate(units)}
        def issue_slab(u):
            p, wh = (u-3)//2, (u-3)&1
            sr = 16 if wh == 0 else 20
            for q in range(7):
                g(f"s_mul_i32 s30, s6, {7*1024}"); g(f"s_add_u32 s30, s30, {(pos[u]%2)*SLAB + q*1024}"); g("s_mov_b32 m0, s30")
                g(f"s_mul_i32 s30, s6, {7*16*3584}"); g(f"s_add_u32 s30, s30, {q*16*3584 + p*64}"); g("s_add_u32 s30, s30, s35")
                g(f"buffer_load_dwordx4 v7, s[{sr}:{sr+3}], s30 offen lds")
            state["out"].append(("slab", u, 7))
        def wait_for(kind, u):
            n = 0; found = False
            for it in state["out"]:
                if found: n += it[2]
                if it[0] == kind and it[1] == u: found = True
            if found: g(f"s_waitcnt vmcnt({n})")
        stv = list(range(144, 160)) + list(range(176, 188))
        def stregs(u):
            return [(128+28*u+2*it) for it in range(14)] if u < 2 else [stv[2*it] for it in range(14)]
        def stage_load(u):
            g(f"s_add_u32 s30, s31, {u*896}")
            for it, rr in enumerate(stregs(u)):
                g(f"s_add_u32 s34, s30, {it*32*2688}")
                g(f"buffer_load_dwordx2 v[{rr}:{rr+1}], v8, s[12:15], s34 offen")
            state["out"].append(("stg", u, 14))
        def stage_write(u):
            wait_for("stg", u)
            g(f"v_add_u32 v11, {(u%2)*SLAB}, v10")
            for it, rr in enumerate(stregs(u)):
                g(f"v_cndmask_b32 v{rr}, v{rr}, 0, s[32:33]"); g(f"v_cndmask_b32 v{rr+1}, v{rr+1}, 0, s[32:33]")
                g(f"ds_write_b64 v11, v[{rr}:{rr+1}] offset:{it*2048}")
        if 0 in pos:
            g("v_lshrrev_b32 v12, 3, v0"); g("v_and_b32 v13, 7, v0")
            g("s_movk_i32 s30, 2688"); g("v_mul_lo_u32 v8, v12, s30"); g("v_lshl_add_u32 v8, v13, 3, v8")
            g("s_mul_i32 s31, s5, 56")
            g("v_lshrrev_b32 v10, 2, v12"); g("v_lshlrev_b32 v10, 8, v10"); g("v_and_b32 v11, 3, v12")
            g("v_lshl_add_u32 v10, v11, 6, v10"); g("v_lshl_add_u32 v10, v13, 3, v10")
            g("v_cmp_eq_u32 s[32:33], 7, v13")
            stage_load(0); stage_load(1); stage_write(0); stage_write(1)
        else:
            issue_slab(units[0])
        def epilogue(u):
            e = G()
            if u == 0:
                phi_pack(e, accs[0], PK, T)
                e(f"buffer_store_dwordx4 v[{PK}:{PK+3}], v9, s[24:27], 0 offen")
                e(f"buffer_store_dwordx4 v[{PK+4}:{PK+7}], v9, s[24:27], 0 offen offset:16"); e.nop(1)
            elif u == 1:
                phi_pack(e, accs[1], PK, T)
                e("v_cmp_gt_u32 vcc, 28, v3"); e.nop(1)
                for i in range(8): e(f"v_cndmask_b32 v{PK+i}, 0, v{PK+i}, vcc")
            elif u == 2:
                ac = accs[2]
                for i in range(8): e(f"v_cvt_pk_bf16_f32 v{VV+i}, v{ac+2*i}, v{ac+2*i+1}")
                e("v_cmp_eq_u32 vcc, 28, v3"); e(f"v_mov_b32 v{T}, 0x3f803f80"); e.nop(1)
                for i in range(8): e(f"v_cndmask_b32 v{VV+i}, v{VV+i}, v{T}, vcc")
                for i in range(16): e(f"v_mov_b32 v{KVA+i}, 0")
                e.nop(1)
                e(f"v_mfma_f32_32x32x16_bf16 v[{KVA}:{KVA+15}], v[{PK}:{PK+3}], v[{VV}:{VV+3}], v[{KVA}:{KVA+15}]")
                e(f"v_mfma_f32_32x32x16_bf16 v[{KVA}:{KVA+15}], v[{PK+4}:{PK+7}], v[{VV+4}:{VV+7}], v[{KVA}:{KVA+15}]")
                e.nop(15); e.nop(3)
                e("v_lshlrev_b32 v10, 4, v1"); e("s_lshl_b32 s36, s6, 12"); e(f"s_add_u32 s36, s36, {RED}"); e("v_add_u32 v10, s36, v10")
                for q in range(4): e(f"ds_write_b128 v10, v[{KVA+4*q}:{KVA+4*q+3}] offset:{q*1024}")
                e("s_waitcnt lgkmcnt(0)"); e("s_barrier")
                e("v_lshlrev_b32 v10, 4, v1"); e("s_lshl_b32 s36, s6, 10"); e(f"s_add_u32 s36, s36, {RED}"); e("v_add_u32 v10, s36, v10")
                for w in range(4): e(f"ds_read_b128 v[{KVA+4*w}:{KVA+4*w+3}], v10 offset:{w*4096}")
                e("s_waitcnt lgkmcnt(0)")
                for w in range(1, 4):
                    for i in range(4): e(f"v_add_f32 v{KVA+i}, v{KVA+i}, v{KVA+4*w+i}")
                e("v_lshlrev_b32 v10, 6, v1"); e("s_lshl_b32 s36, s4, 16"); e("s_lshl_b32 s37, s5, 12"); e("s_add_u32 s36, s36, s37")
                e("s_lshl_b32 s37, s6, 4"); e("s_add_u32 s36, s36, s37"); e(f"s_add_u32 s36, s36, {WS_KVP}")
                e(f"buffer_store_dwordx4 v[{KVA}:{KVA+3}], v10, s[24:27], s36 offen"); e.nop(1)
            else:
                p = (u-3)//2; G0, G1 = accs[u-1], accs[u]
                for i in range(0, 16, 2):
                    a, b = G0+i, G0+i+1; c, d = G1+i, G1+i+1
                    rnd2(e, a, b, T); rnd2(e, c, d, T); silu_rnd(e, a, b, T)
                    e(f"v_mul_f32 v{a}, v{a}, v{c}"); e(f"v_mul_f32 v{b}, v{b}, v{d}")
                    e(f"v_cvt_pk_bf16_f32 v{PK+i//2}, v{a}, v{b}")
                e(f"buffer_store_dwordx4 v[{PK}:{PK+3}], v15, s[24:27], 0 offen offset:{p*64}")
                if p < 3: e(f"buffer_store_dwordx4 v[{PK+4}:{PK+7}], v15, s[24:27], 0 offen offset:{p*64+32}")
                e.nop(1)
            return e.o
        D = 4; NB = 6
        pend = []
        for idx, u in enumerate(units):
            if u >= 3: wait_for("slab", u)
            if idx == 0: wait_for("a", -1)
            g("s_waitcnt lgkmcnt(0)"); g("s_barrier")
            nxt = units[idx+1] if idx+1 < len(units) else None
            if nxt is not None:
                if nxt >= 3: issue_slab(nxt)
                elif nxt == 2: stage_write(2)
            if u == 0: stage_load(2)
            acc = accs[u]
            for i in range(16): g(f"v_mov_b32 v{acc+i}, 0")
            g(f"v_add_u32 v2, {(idx%2)*SLAB}, v6")
            def rd(ks):
                b = BF + 4*(ks % NB)
                g(f"ds_read_b64_tr_b16 v[{b}:{b+1}], v2 offset:{ks*1024}")
                g(f"ds_read_b64_tr_b16 v[{b+2}:{b+3}], v2 offset:{ks*1024+256}")
            for ks in range(D): rd(ks)
            nslots = 27 if u < 3 or (u-3)&1 else 55
            per = -(-len(pend) // nslots) if pend else 0
            def emit(ls):
                for l in ls:
                    g.o.append(l)
                    if "buffer_store" in l: state["out"].append(("st", u, 1))
            for ks in range(28):
                if ks + D < 28: rd(ks+D)
                g(f"s_waitcnt lgkmcnt({2*min(D, 27-ks)})")
                b = BF + 4*(ks % NB); a = A + 4*ks
                if u == 0 or u >= 3:
                    g(f"v_mfma_f32_32x32x16_bf16 v[{acc}:{acc+15}], v[{b}:{b+3}], v[{a}:{a+3}], v[{acc}:{acc+15}]")
                else:
                    g(f"v_mfma_f32_32x32x16_bf16 v[{acc}:{acc+15}], v[{a}:{a+3}], v[{b}:{b+3}], v[{acc}:{acc+15}]")
                if ks >= 1:
                    chunk, pend = pend[:per], pend[per:]; emit(chunk)
            if u < 3 or (u-3)&1:
                emit(pend); pend = epilogue(u)
        g.nop(15); g.nop(3)
        g.o += pend
    path([0, 1, 2, 3, 4]); g("s_branch K1_done")
    g.lab("K1_typeB"); path([5, 6, 7, 8, 9, 10])
    g.lab("K1_done"); g("s_endpgm")
    return g.o

def k2():
    g = G()
    ACC = 64; HF = 128; BF = 192; T = 224
    g("s_cmp_ge_u32 s2, 240"); g("s_cbranch_scc1 K2_done")
    g("s_load_dwordx2 s[8:9], s[0:1], 48"); g("s_load_dwordx2 s[24:25], s[0:1], 72")
    consts(g)
    g("v_and_b32 v1, 63, v0"); g("v_lshrrev_b32 v2, 6, v0"); g.nop(); g("v_readfirstlane_b32 s6, v2")
    g("s_waitcnt lgkmcnt(0)")
    srd(g, 8, 6, 1792*896); srd(g, 24, 9, 0x1000000)
    g("s_cmp_lt_u32 s2, 224"); g("s_cbranch_scc1 K2_gemm")
    g("s_cmp_lg_u32 s6, 0"); g("s_cbranch_scc1 K2_done")
    g("s_sub_u32 s4, s2, 224"); g("v_lshlrev_b32 v3, 6, v1")
    for i in range(16): g(f"v_mov_b32 v{16+i}, 0")
    for rb in range(16):
        g("s_lshl_b32 s30, s4, 12"); g(f"s_add_u32 s30, s30, {WS_KVP + rb*65536}")
        for q in range(4): g(f"buffer_load_dwordx4 v[{32+4*q}:{35+4*q}], v3, s[24:27], s30 offen offset:{q*16}")
        g("s_waitcnt vmcnt(0)")
        for i in range(16): g(f"v_add_f32 v{16+i}, v{16+i}, v{32+i}")
    for i in range(8): g(f"v_cvt_pk_bf16_f32 v{48+i}, v{16+2*i}, v{17+2*i}")
    g("v_lshlrev_b32 v3, 5, v1"); g("s_lshl_b32 s30, s4, 11"); g(f"s_add_u32 s30, s30, {WS_KV}")
    g("buffer_store_dwordx4 v[48:51], v3, s[24:27], s30 offen"); g("buffer_store_dwordx4 v[52:55], v3, s[24:27], s30 offen offset:16")
    g("s_branch K2_done")
    g.lab("K2_gemm")
    g("s_and_b32 s4, s2, 31"); g("s_lshr_b32 s5, s2, 5")
    g("v_and_b32 v3, 31, v1"); g("v_lshrrev_b32 v4, 5, v1")
    g("s_lshl_b32 s7, s4, 6"); g("v_add_u32 v5, s7, v3"); g("s_movk_i32 s30, 3584"); g("v_mul_lo_u32 v5, v5, s30")
    g("v_lshl_add_u32 v5, v4, 4, v5"); g("s_mul_i32 s30, s6, 896"); g(f"s_add_u32 s30, s30, {WS_H}"); g("v_add_u32 v5, s30, v5")
    g(f"v_add_u32 v8, {32*3584}, v5")
    g("v_lshrrev_b32 v6, 5, v1"); g("v_lshlrev_b32 v6, 9, v6")
    g("v_bfe_u32 v7, v1, 2, 2"); g("v_lshl_add_u32 v6, v7, 6, v6")
    g("v_bfe_u32 v7, v1, 4, 1"); g("v_lshl_add_u32 v6, v7, 5, v6")
    g("v_and_b32 v7, 3, v1"); g("v_lshl_add_u32 v6, v7, 3, v6"); g("s_lshl_b32 s31, s6, 14"); g("v_add_u32 v6, s31, v6")
    g("v_bfe_u32 v7, v1, 4, 1"); g("v_lshlrev_b32 v7, 3, v7"); g("v_lshrrev_b32 v9, 5, v1"); g("v_lshl_add_u32 v7, v9, 2, v7")
    g("v_bfe_u32 v9, v1, 2, 2"); g("v_add_u32 v7, v7, v9"); g("s_movk_i32 s30, 896"); g("v_mul_lo_u32 v7, v7, s30")
    g("v_and_b32 v9, 3, v1"); g("v_lshl_add_u32 v7, v9, 4, v7")
    g("s_mul_i32 s32, s6, {}".format(28*16*896)); g("s_lshl_b32 s30, s5, 7"); g("s_add_u32 s32, s32, s30")
    for i in range(64): g(f"v_mov_b32 v{ACC+i}, 0")
    P = 6
    def issue(ks):
        for un in range(2):
            g(f"s_add_u32 s30, s31, {(ks%8)*2048 + un*1024}"); g("s_mov_b32 m0, s30")
            g(f"s_add_u32 s30, s32, {ks*16*896 + un*64}")
            g(f"buffer_load_dwordx4 v7, s[8:11], s30 offen lds")
        h = HF + 8*(ks % 8)
        g(f"buffer_load_dwordx4 v[{h}:{h+3}], v5, s[24:27], 0 offen offset:{ks*32}")
        g(f"buffer_load_dwordx4 v[{h+4}:{h+7}], v8, s[24:27], 0 offen offset:{ks*32}")
    for ks in range(P): issue(ks)
    for ks in range(28):
        if ks + P < 28: issue(ks+P)
        g(f"s_waitcnt vmcnt({4*min(P, 27-ks)})")
        o = (ks%8)*2048
        for un in range(2):
            g(f"ds_read_b64_tr_b16 v[{BF+4*un}:{BF+4*un+1}], v6 offset:{o+un*1024}")
            g(f"ds_read_b64_tr_b16 v[{BF+4*un+2}:{BF+4*un+3}], v6 offset:{o+un*1024+256}")
        g("s_waitcnt lgkmcnt(0)")
        h = HF + 8*(ks % 8)
        for un in range(2):
            for t in range(2):
                a = ACC + 16*(2*un+t)
                g(f"v_mfma_f32_32x32x16_bf16 v[{a}:{a+15}], v[{BF+4*un}:{BF+4*un+3}], v[{h+4*t}:{h+4*t+3}], v[{a}:{a+15}]")
    g.nop(15); g.nop(3)
    g("s_barrier")
    g("v_lshlrev_b32 v10, 4, v1"); g("s_lshl_b32 s30, s6, 14"); g("v_add_u32 v10, s30, v10")
    for q in range(16): g(f"ds_write_b128 v10, v[{ACC+4*q}:{ACC+4*q+3}] offset:{q*1024}")
    g("s_waitcnt lgkmcnt(0)"); g("s_barrier")
    g("v_lshlrev_b32 v10, 4, v1"); g("s_lshl_b32 s30, s6, 12"); g("v_add_u32 v10, s30, v10")
    for w in range(4):
        for q in range(4): g(f"ds_read_b128 v[{ACC+16*w+4*q}:{ACC+16*w+4*q+3}], v10 offset:{w*16384+q*1024}")
    g("s_waitcnt lgkmcnt(0)")
    for w in range(1, 4):
        for i in range(16): g(f"v_add_f32 v{ACC+i}, v{ACC+i}, v{ACC+16*w+i}")
    for i in range(0, 16, 2):
        rnd2(g, ACC+i, ACC+i+1, T); silu_rnd(g, ACC+i, ACC+i+1, T)
        g(f"v_cvt_pk_bf16_f32 v{BF+i//2}, v{ACC+i}, v{ACC+i+1}")
    g("s_and_b32 s30, s6, 1"); g("s_lshl_b32 s30, s30, 5"); g("s_add_u32 s30, s30, s7"); g("v_add_u32 v10, s30, v3")
    g("s_movk_i32 s30, 896"); g("v_mul_lo_u32 v10, v10, s30"); g("v_lshl_add_u32 v10, v4, 5, v10")
    g("s_lshr_b32 s30, s6, 1"); g("s_lshl_b32 s30, s30, 6"); g("s_lshl_b32 s33, s5, 7"); g("s_add_u32 s30, s30, s33"); g(f"s_add_u32 s30, s30, {WS_G}")
    g(f"buffer_store_dwordx4 v[{BF}:{BF+3}], v10, s[24:27], s30 offen"); g(f"buffer_store_dwordx4 v[{BF+4}:{BF+7}], v10, s[24:27], s30 offen offset:16")
    g.lab("K2_done"); g("s_endpgm")
    return g.o

def k3():
    g = G()
    ACC = 64; PQF = 96; KVF = 104; BF = 112; OF = 128; T = 160; GX = 176
    OL = 0
    g("s_cmp_ge_u32 s2, 128"); g("s_cbranch_scc1 K3_done")
    g("s_load_dwordx2 s[8:9], s[0:1], 16"); g("s_load_dwordx2 s[12:13], s[0:1], 0"); g("s_load_dwordx2 s[16:17], s[0:1], 56")
    g("s_load_dwordx2 s[24:25], s[0:1], 72")
    consts(g)
    g("v_and_b32 v1, 63, v0"); g("v_lshrrev_b32 v2, 6, v0"); g.nop(); g("v_readfirstlane_b32 s6, v2")
    g("s_waitcnt lgkmcnt(0)")
    srd(g, 8, 2, 448*896); srd(g, 12, 0, 2048*896); srd(g, 16, 7, 2048*896); srd(g, 24, 9, 0x1000000)
    g("s_and_b32 s4, s2, 63"); g("s_lshr_b32 s5, s2, 6"); g("s_lshl_b32 s7, s4, 5")
    g("v_and_b32 v3, 31, v1"); g("v_lshrrev_b32 v4, 5, v1")
    g("v_add_u32 v5, s7, v3"); g("v_lshlrev_b32 v5, 10, v5"); g("v_lshl_add_u32 v5, v4, 5, v5")
    g("v_lshlrev_b32 v8, 5, v1")
    g("v_add_u32 v14, 32, v3"); g("v_lshlrev_b32 v14, 2, v14")
    g("v_lshlrev_b32 v10, 4, v1"); g(f"v_add_u32 v10, {65536}, v10")
    for hh in range(4):
        g("s_lshl_b32 s30, s6, 8"); g(f"s_add_u32 s30, s30, {hh*64}")
        g(f"buffer_load_dwordx4 v[{PQF}:{PQF+3}], v5, s[24:27], s30 offen"); g(f"buffer_load_dwordx4 v[{PQF+4}:{PQF+7}], v5, s[24:27], s30 offen offset:16")
        g("s_lshl_b32 s30, s6, 13"); g(f"s_add_u32 s30, s30, {WS_KV + hh*2048}")
        g(f"buffer_load_dwordx4 v[{KVF}:{KVF+3}], v8, s[24:27], s30 offen"); g(f"buffer_load_dwordx4 v[{KVF+4}:{KVF+7}], v8, s[24:27], s30 offen offset:16")
        for i in range(16): g(f"v_mov_b32 v{ACC+i}, 0")
        g("s_waitcnt vmcnt(0)")
        g(f"v_mfma_f32_32x32x16_bf16 v[{ACC}:{ACC+15}], v[{KVF}:{KVF+3}], v[{PQF}:{PQF+3}], v[{ACC}:{ACC+15}]")
        g(f"v_mfma_f32_32x32x16_bf16 v[{ACC}:{ACC+15}], v[{KVF+4}:{KVF+7}], v[{PQF+4}:{PQF+7}], v[{ACC}:{ACC+15}]")
        g.nop(15); g.nop(3)
        g(f"ds_bpermute_b32 v{T}, v14, v{ACC+12}"); g("s_waitcnt lgkmcnt(0)")
        rnd2(g, T, T+1, T+2); g(f"v_add_f32 v{T}, s91, v{T}"); rnd2(g, T, T+1, T+2)
        g(f"v_rcp_f32 v{T}, v{T}"); g.nop()
        for i in range(0, 16, 2):
            rnd2(g, ACC+i, ACC+i+1, T+2)
            g(f"v_mul_f32 v{ACC+i}, v{ACC+i}, v{T}"); g(f"v_mul_f32 v{ACC+i+1}, v{ACC+i+1}, v{T}")
            g(f"v_cvt_pk_bf16_f32 v{OF+i//2}, v{ACC+i}, v{ACC+i+1}")
        g("v_cmp_eq_u32 vcc, 0, v4"); g.nop(1)
        g(f"v_cndmask_b32 v{OF+6}, 0, v{OF+6}, vcc"); g(f"v_cndmask_b32 v{OF+7}, 0, v{OF+7}, vcc")
        g("s_lshl_b32 s30, s6, 13"); g(f"v_add_u32 v11, s30, v10")
        g(f"ds_write_b128 v11, v[{OF}:{OF+3}] offset:{OL+hh*2048}"); g(f"ds_write_b128 v11, v[{OF+4}:{OF+7}] offset:{OL+hh*2048+1024}")
    g("s_waitcnt lgkmcnt(0)"); g("s_barrier")
    g("v_lshrrev_b32 v6, 5, v1"); g("v_lshlrev_b32 v6, 9, v6")
    g("v_bfe_u32 v7, v1, 2, 2"); g("v_lshl_add_u32 v6, v7, 6, v6")
    g("v_bfe_u32 v7, v1, 4, 1"); g("v_lshl_add_u32 v6, v7, 5, v6")
    g("v_and_b32 v7, 3, v1"); g("v_lshl_add_u32 v6, v7, 3, v6"); g("s_lshl_b32 s31, s6, 14"); g("v_add_u32 v6, s31, v6")
    g("v_bfe_u32 v7, v1, 4, 1"); g("v_lshlrev_b32 v7, 3, v7"); g("v_lshrrev_b32 v9, 5, v1"); g("v_lshl_add_u32 v7, v9, 2, v7")
    g("v_bfe_u32 v9, v1, 2, 2"); g("v_add_u32 v7, v7, v9")
    g("v_add_u32 v12, 16, v7"); g("v_min_u32 v12, 27, v12")
    g("s_movk_i32 s30, 896"); g("v_mul_lo_u32 v7, v7, s30"); g("v_mul_lo_u32 v12, v12, s30")
    g("v_and_b32 v9, 3, v1"); g("v_lshl_add_u32 v7, v9, 4, v7"); g("v_lshl_add_u32 v12, v9, 4, v12")
    g("v_add_u32 v13, s7, v3"); g("s_movk_i32 s30, 896"); g("v_mul_lo_u32 v13, v13, s30")
    for rep in range(2):
        if rep == 1:
            g("s_cmp_eq_u32 s6, 3"); g("s_cbranch_scc1 K3_done")
        g("s_mul_i32 s33, s5, 7"); g("s_add_u32 s33, s33, s6"); g(f"s_add_u32 s33, s33, {4*rep}")
        g("s_lshl_b32 s32, s33, 6")
        for i in range(16): g(f"v_mov_b32 v{ACC+i}, 0")
        P = 6
        def issue(ks):
            g(f"s_add_u32 s30, s31, {(ks%8)*1024}"); g("s_mov_b32 m0, s30")
            g(f"s_add_u32 s30, s32, {(ks//2)*28*896}")
            g(f"buffer_load_dwordx4 v{7 if ks%2==0 else 12}, s[8:11], s30 offen lds")
        for ks in range(P): issue(ks)
        for ks in range(32):
            if ks + P < 32: issue(ks+P)
            g(f"s_waitcnt vmcnt({min(P, 31-ks)})")
            o = (ks%8)*1024
            g(f"ds_read_b64_tr_b16 v[{BF}:{BF+1}], v6 offset:{o}"); g(f"ds_read_b64_tr_b16 v[{BF+2}:{BF+3}], v6 offset:{o+256}")
            g(f"ds_read_b128 v[{BF+4}:{BF+7}], v10 offset:{OL+ks*1024}")
            g("s_waitcnt lgkmcnt(0)")
            g(f"v_mfma_f32_32x32x16_bf16 v[{ACC}:{ACC+15}], v[{BF}:{BF+3}], v[{BF+4}:{BF+7}], v[{ACC}:{ACC+15}]")
        g(f"s_add_u32 s30, s32, {WS_G}"); g("v_lshl_add_u32 v11, v4, 5, v13")
        g(f"buffer_load_dwordx4 v[{GX}:{GX+3}], v11, s[24:27], s30 offen"); g(f"buffer_load_dwordx4 v[{GX+4}:{GX+7}], v11, s[24:27], s30 offen offset:16")
        g("v_lshl_add_u32 v11, v4, 3, v13")
        for q in range(4): g(f"buffer_load_dwordx2 v[{GX+8+2*q}:{GX+9+2*q}], v11, s[12:15], s32 offen offset:{q*16}")
        g.nop(15); g("s_waitcnt vmcnt(0)")
        for i in range(0, 16, 2):
            a, b = ACC+i, ACC+i+1
            rnd2(g, a, b, T)
            g(f"v_lshlrev_b32 v{T}, 16, v{GX+i//2}"); g(f"v_and_b32 v{T+1}, 0xffff0000, v{GX+i//2}")
            g(f"v_mul_f32 v{a}, v{a}, v{T}"); g(f"v_mul_f32 v{b}, v{b}, v{T+1}")
            rnd2(g, a, b, T)
            g(f"v_lshlrev_b32 v{T}, 16, v{GX+8+i//2}"); g(f"v_and_b32 v{T+1}, 0xffff0000, v{GX+8+i//2}")
            g(f"v_add_f32 v{a}, v{a}, v{T}"); g(f"v_add_f32 v{b}, v{b}, v{T+1}")
            g(f"v_cvt_pk_bf16_f32 v{GX+8+i//2}, v{a}, v{b}")
        for q in range(4): g(f"buffer_store_dwordx2 v[{GX+8+2*q}:{GX+9+2*q}], v11, s[16:19], s32 offen offset:{q*16}")
        g("s_waitcnt vmcnt(0)")
    g.lab("K3_done"); g("s_endpgm")
    return g.o

hdr = open(f"cdna_kernels/{NAME}.s.ref").read().split("; Override")[0]
out = hdr
out += "; @launch kernel=k0_kernel grid=(512,1,1) block=(256,1,1) lds=0\n"
out += "; @launch kernel=k1_kernel grid=(512,1,1) block=(256,1,1) lds=73728\n"
out += "; @launch kernel=k2_kernel grid=(240,1,1) block=(256,1,1) lds=65536\n"
out += "; @launch kernel=k3_kernel grid=(128,1,1) block=(256,1,1) lds=98304\n"
out += '.amdgcn_target "amdgcn-amd-amdhsa--gfx950"\n.text\n'
for nm, f in (("k0_kernel", k0), ("k1_kernel", k1), ("k2_kernel", k2), ("k3_kernel", k3)):
    out += f".globl {nm}\n.p2align 8\n.type {nm},@function\n{nm}:\n" + "\n".join(f()) + "\n"
out += kdesc("k0_kernel", 32) + kdesc("k1_kernel", 256) + kdesc("k2_kernel", 256) + kdesc("k3_kernel", 256)
open(f"cdna_kernels/{NAME}.s", "w").write(out)
```

```python
import sys
NAME = "recurrent_scan__linear_attn_block__glu_gated_swiglu__prompt"
WS_PQ = 0x000000; WS_H = 0x200000; WS_KVP = 0xA00000; WS_KV = 0xB00000; WS_G = 0xC00000
L2E = 0x3fb8aa3b
EPS6 = 0x358637bd

class G:
    def __init__(s): s.o = []
    def __call__(s, t): s.o.append("    " + t)
    def lab(s, t): s.o.append(t + ":")
    def nop(s, n=0): s(f"s_nop {n}")

def srd(g, d, slot, nbytes, base_add=0):
    if base_add:
        g(f"s_add_u32 s{d}, s{d}, {base_add}"); g(f"s_addc_u32 s{d+1}, s{d+1}, 0")
    g(f"s_and_b32 s{d+1}, s{d+1}, 0xffff")
    g(f"s_mov_b32 s{d+2}, {nbytes}"); g(f"s_mov_b32 s{d+3}, 0x20000")

def rnd2(g, a, b, t):
    g(f"v_cvt_pk_bf16_f32 v{t}, v{a}, v{b}")
    g(f"v_lshlrev_b32 v{a}, 16, v{t}")
    g(f"v_and_b32 v{b}, 0xffff0000, v{t}")

def phi_pack(g, acc, out, t):
    for i in range(0, 16, 2):
        a, b = acc+i, acc+i+1
        rnd2(g, a, b, t)
        g(f"v_mul_f32 v{t}, s90, v{a}"); g(f"v_mul_f32 v{t+1}, s90, v{b}")
        g(f"v_exp_f32 v{t}, v{t}"); g(f"v_exp_f32 v{t+1}, v{t+1}")
        g(f"v_add_f32 v{t+2}, 1.0, v{a}"); g(f"v_add_f32 v{t+3}, 1.0, v{b}")
        g(f"v_cmp_lt_f32 vcc, 0, v{a}"); g.nop(1)
        g(f"v_cndmask_b32 v{a}, v{t}, v{t+2}, vcc")
        g(f"v_cmp_lt_f32 vcc, 0, v{b}"); g.nop(1)
        g(f"v_cndmask_b32 v{b}, v{t+1}, v{t+3}, vcc")
        rnd2(g, a, b, t)
        g(f"v_add_f32 v{a}, s91, v{a}"); g(f"v_add_f32 v{b}, s91, v{b}")
        g(f"v_cvt_pk_bf16_f32 v{out+i//2}, v{a}, v{b}")

def silu_rnd(g, a, b, t):
    for r, tt in ((a, t), (b, t+1)):
        g(f"v_mul_f32 v{tt}, s92, v{r}")
        g(f"v_exp_f32 v{tt}, v{tt}"); g.nop()
        g(f"v_add_f32 v{tt}, 1.0, v{tt}")
        g(f"v_rcp_f32 v{tt}, v{tt}"); g.nop()
        g(f"v_mul_f32 v{r}, v{r}, v{tt}")
    rnd2(g, a, b, t)

def consts(g):
    g(f"s_mov_b32 s90, {L2E}"); g(f"s_mov_b32 s91, {EPS6}"); g(f"s_mov_b32 s92, {L2E | 0x80000000}")

def kdesc(name, vg, sg=100):
    return f""".section .rodata,"a"
.p2align 6
.amdhsa_kernel {name}
  .amdhsa_next_free_vgpr {vg}
  .amdhsa_next_free_sgpr {sg}
  .amdhsa_accum_offset {vg}
  .amdhsa_group_segment_fixed_size 0
  .amdhsa_kernarg_size 80
  .amdhsa_user_sgpr_count 2
  .amdhsa_user_sgpr_kernarg_segment_ptr 1
  .amdhsa_system_sgpr_workgroup_id_x 1
.end_amdhsa_kernel
"""

WS_XN = 0xE00000
def k0():
    g = G()
    g("s_cmp_ge_u32 s2, 512"); g("s_cbranch_scc1 K0_done")
    g("s_load_dwordx2 s[8:9], s[0:1], 0"); g("s_load_dwordx2 s[24:25], s[0:1], 72")
    g("v_and_b32 v1, 63, v0"); g("v_lshrrev_b32 v2, 6, v0"); g.nop(); g("v_readfirstlane_b32 s6, v2")
    g("s_waitcnt lgkmcnt(0)")
    srd(g, 8, 0, 2048*896); srd(g, 24, 9, 0x1000000)
    g("s_lshl_b32 s4, s2, 2"); g("s_add_u32 s4, s4, s6")
    g("s_mul_i32 s5, s4, 896"); g("v_lshlrev_b32 v3, 4, v1")
    g("v_cmp_gt_u32 s[32:33], 56, v1")
    g("v_min_u32 v3, 880, v3")
    g("buffer_load_dwordx4 v[4:7], v3, s[8:11], s5 offen")
    g("s_waitcnt vmcnt(0)")
    for q in range(4): g(f"v_cndmask_b32 v{4+q}, 0, v{4+q}, s[32:33]")
    for q in range(4):
        g(f"v_lshlrev_b32 v{8+2*q}, 16, v{4+q}"); g(f"v_and_b32 v{9+2*q}, 0xffff0000, v{4+q}")
    def wavesum(r):
        for m in (1, 2, 4, 8, 16):
            g(f"ds_swizzle_b32 v20, v{r} offset:{(m<<10)|0x1f}"); g("s_waitcnt lgkmcnt(0)"); g(f"v_add_f32 v{r}, v{r}, v20")
        g(f"ds_bpermute_b32 v20, v21, v{r}"); g("s_waitcnt lgkmcnt(0)"); g(f"v_add_f32 v{r}, v{r}, v20")
    g("v_lshlrev_b32 v21, 2, v1"); g("v_xor_b32 v21, 128, v21")
    g("v_pk_add_f32 v[16:17], v[8:9], v[10:11]"); g("v_pk_add_f32 v[18:19], v[12:13], v[14:15]")
    g("v_pk_add_f32 v[16:17], v[16:17], v[18:19]"); g("v_add_f32 v16, v16, v17")
    wavesum(16)
    g("v_mul_f32 v16, 0x3b124925, v16"); g("v_mov_b32 v17, v16")
    for q in range(4): g(f"v_pk_add_f32 v[{24+2*q}:{25+2*q}], v[{8+2*q}:{9+2*q}], v[16:17] neg_lo:[0,1] neg_hi:[0,1]")
    g("v_pk_mul_f32 v[18:19], v[24:25], v[24:25]")
    for q in range(1, 4): g(f"v_pk_fma_f32 v[18:19], v[{24+2*q}:{25+2*q}], v[{24+2*q}:{25+2*q}], v[18:19]")
    g("v_add_f32 v18, v18, v19"); g("v_cndmask_b32 v18, 0, v18, s[32:33]")
    wavesum(18)
    g("v_mul_f32 v18, 0x3b124925, v18")
    rnd2(g, 18, 16, 22)
    g("v_add_f32 v18, 0x3727c5ac, v18"); rnd2(g, 18, 19, 22)
    g("v_sqrt_f32 v18, v18"); g.nop(); rnd2(g, 18, 19, 22)
    g("v_rcp_f32 v18, v18"); g.nop(); g("v_mov_b32 v19, v18"); g("v_mov_b32 v17, v16")
    for q in range(4):
        g(f"v_pk_add_f32 v[{8+2*q}:{9+2*q}], v[{8+2*q}:{9+2*q}], v[16:17] neg_lo:[0,1] neg_hi:[0,1]")
        g(f"v_cvt_pk_bf16_f32 v{4+q}, v{8+2*q}, v{9+2*q}")
        g(f"v_lshlrev_b32 v{8+2*q}, 16, v{4+q}"); g(f"v_and_b32 v{9+2*q}, 0xffff0000, v{4+q}")
        g(f"v_pk_mul_f32 v[{8+2*q}:{9+2*q}], v[{8+2*q}:{9+2*q}], v[18:19]")
        g(f"v_cvt_pk_bf16_f32 v{4+q}, v{8+2*q}, v{9+2*q}")
    g("v_lshrrev_b32 v3, 1, v1"); g("v_lshlrev_b32 v3, 10, v3"); g("v_and_b32 v2, 1, v1"); g("v_lshl_add_u32 v3, v2, 9, v3")
    g("s_lshr_b32 s30, s4, 5"); g("s_mul_i32 s30, s30, 28672"); g("s_and_b32 s31, s4, 31"); g("s_lshl_b32 s31, s31, 4")
    g("s_add_u32 s30, s30, s31"); g(f"s_add_u32 s30, s30, {WS_XN}")
    g("s_and_saveexec_b64 s[34:35], s[32:33]")
    g("buffer_store_dwordx4 v[4:7], v3, s[24:27], s30 offen")
    g.lab("K0_done"); g("s_endpgm")
    return g.o

def k1():
    g = G()
    A = 16; BF = 192; T = 216; PK = 224; VV = 232; KVA = 240
    SLAB = 28672; RED = 2*SLAB
    g("s_cmp_ge_u32 s2, 256"); g("s_cbranch_scc1 K1_done")
    g("s_load_dwordx2 s[12:13], s[0:1], 8")
    g("s_load_dwordx2 s[16:17], s[0:1], 32"); g("s_load_dwordx2 s[20:21], s[0:1], 40")
    g("s_load_dwordx2 s[24:25], s[0:1], 72")
    consts(g)
    g("s_bfe_u32 s4, s2, 0x30004"); g("s_and_b32 s5, s2, 15")
    g("v_and_b32 v1, 63, v0"); g("v_lshrrev_b32 v2, 6, v0")
    g.nop(); g("v_readfirstlane_b32 s6, v2")
    g("s_waitcnt lgkmcnt(0)")
    srd(g, 12, 1, 448*2688); srd(g, 16, 4, 448*3584); srd(g, 20, 5, 448*3584); srd(g, 24, 9, 0x1000000)
    g("s_lshl_b32 s7, s4, 8"); g("s_lshl_b32 s30, s6, 5"); g("s_add_u32 s7, s7, s30")
    g("v_and_b32 v3, 31, v1"); g("v_lshrrev_b32 v4, 5, v1")
    g("v_lshlrev_b32 v5, 4, v1")
    g("v_lshrrev_b32 v6, 5, v1"); g("v_lshlrev_b32 v6, 9, v6")
    g("v_bfe_u32 v7, v1, 2, 2"); g("v_lshl_add_u32 v6, v7, 6, v6")
    g("v_bfe_u32 v7, v1, 4, 1"); g("v_lshl_add_u32 v6, v7, 5, v6")
    g("v_and_b32 v7, 3, v1"); g("v_lshl_add_u32 v6, v7, 3, v6")
    g("v_lshrrev_b32 v7, 4, v1"); g("v_lshlrev_b32 v7, 2, v7"); g("v_bfe_u32 v8, v1, 2, 2"); g("v_add_u32 v7, v7, v8")
    g("s_movk_i32 s30, 3584"); g("v_mul_lo_u32 v7, v7, s30"); g("v_and_b32 v8, 3, v1"); g("v_lshl_add_u32 v7, v8, 4, v7")
    g("v_add_u32 v8, s7, v3")
    g("v_lshlrev_b32 v9, 10, v8"); g("v_lshl_add_u32 v9, v4, 5, v9"); g("s_lshl_b32 s30, s5, 6"); g("v_add_u32 v9, s30, v9")
    g("s_movk_i32 s30, 3584"); g("v_mul_lo_u32 v15, v8, s30"); g("v_lshl_add_u32 v15, v4, 4, v15")
    g("s_mul_i32 s30, s5, 224"); g(f"s_add_u32 s30, s30, {WS_H}"); g("v_add_u32 v15, s30, v15")
    g("s_mul_i32 s35, s5, 224")
    g("s_cmp_ge_u32 s2, 128"); g("s_cbranch_scc1 K1_typeB")
    accs = {0:128, 1:160, 2:128, 3:160, 4:176, 5:128, 6:144, 7:160, 8:176, 9:128, 10:144}
    def path(units):
        state = {"out": []}
        def load_a():
            g("s_lshr_b32 s30, s7, 5"); g("s_mul_i32 s30, s30, 28672"); g(f"s_add_u32 s30, s30, {WS_XN}")
            for k4 in range(7):
                for q in range(4):
                    ks = 4*k4+q
                    g(f"buffer_load_dwordx4 v[{A+4*ks}:{A+4*ks+3}], v5, s[24:27], s30 offen offset:{q*1024}")
                    state["out"].append(("a", ks, 1))
                g("s_add_u32 s30, s30, 4096")
        pos = {u: i for i, u in enumerate(units)}
        def issue_slab(u):
            p, wh = (u-3)//2, (u-3)&1
            sr = 16 if wh == 0 else 20
            for q in range(4):
                if q < 3: g(f"s_add_u32 s38, s6, {8*q}")
                else: g("s_and_b32 s38, s6, 3"); g("s_add_u32 s38, s38, 24")
                g(f"s_lshl_b32 s30, s38, 10"); g(f"s_add_u32 s30, s30, {(pos[u]%2)*SLAB}"); g("s_mov_b32 m0, s30")
                g(f"s_mul_i32 s30, s38, {16*3584}"); g(f"s_add_u32 s30, s30, {p*64}"); g("s_add_u32 s30, s30, s35")
                g(f"buffer_load_dwordx4 v7, s[{sr}:{sr+3}], s30 offen lds")
            state["out"].append(("slab", u, 4))
        def wait_for(kind, u):
            n = 0; found = False
            for it in state["out"]:
                if found: n += it[2]
                if it[0] == kind and it[1] == u: found = True
            if found: g(f"s_waitcnt vmcnt({n})")
        stv = list(range(144, 160)) + list(range(176, 188))
        def stregs(u):
            return [(128+14*u+2*it) for it in range(7)] if u < 2 else [stv[2*it] for it in range(7)]
        def stage_load(u):
            g(f"s_add_u32 s30, s31, {u*896}")
            for it, rr in enumerate(stregs(u)):
                g(f"s_add_u32 s34, s30, {it*64*2688}")
                g(f"buffer_load_dwordx2 v[{rr}:{rr+1}], v8, s[12:15], s34 offen")
            state["out"].append(("stg", u, 7))
        def stage_write(u):
            wait_for("stg", u)
            g(f"v_add_u32 v11, {(u%2)*SLAB}, v10")
            for it, rr in enumerate(stregs(u)):
                g(f"v_cndmask_b32 v{rr}, v{rr}, 0, s[32:33]"); g(f"v_cndmask_b32 v{rr+1}, v{rr+1}, 0, s[32:33]")
                g(f"ds_write_b64 v11, v[{rr}:{rr+1}] offset:{it*4096}")
        if 0 in pos:
            g("v_lshrrev_b32 v12, 3, v0"); g("v_and_b32 v13, 7, v0")
            g("s_movk_i32 s30, 2688"); g("v_mul_lo_u32 v8, v12, s30"); g("v_lshl_add_u32 v8, v13, 3, v8")
            g("s_mul_i32 s31, s5, 56")
            g("v_lshrrev_b32 v10, 2, v12"); g("v_lshlrev_b32 v10, 8, v10"); g("v_and_b32 v11, 3, v12")
            g("v_lshl_add_u32 v10, v11, 6, v10"); g("v_lshl_add_u32 v10, v13, 3, v10")
            g("v_cmp_eq_u32 s[32:33], 7, v13")
            stage_load(0); stage_load(1); load_a(); stage_write(0); stage_write(1)
        else:
            issue_slab(units[0]); load_a()
        def epilogue(u):
            e = G()
            if u == 0:
                phi_pack(e, accs[0], PK, T)
                e(f"buffer_store_dwordx4 v[{PK}:{PK+3}], v9, s[24:27], 0 offen")
                e(f"buffer_store_dwordx4 v[{PK+4}:{PK+7}], v9, s[24:27], 0 offen offset:16"); e.nop(1)
            elif u == 1:
                phi_pack(e, accs[1], PK, T)
                e("v_cmp_gt_u32 vcc, 28, v3"); e.nop(1)
                for i in range(8): e(f"v_cndmask_b32 v{PK+i}, 0, v{PK+i}, vcc")
            elif u == 2:
                ac = accs[2]
                for i in range(8): e(f"v_cvt_pk_bf16_f32 v{VV+i}, v{ac+2*i}, v{ac+2*i+1}")
                e("v_cmp_eq_u32 vcc, 28, v3"); e(f"v_mov_b32 v{T}, 0x3f803f80"); e.nop(1)
                for i in range(8): e(f"v_cndmask_b32 v{VV+i}, v{VV+i}, v{T}, vcc")
                for i in range(16): e(f"v_mov_b32 v{KVA+i}, 0")
                e.nop(1)
                e(f"v_mfma_f32_32x32x16_bf16 v[{KVA}:{KVA+15}], v[{PK}:{PK+3}], v[{VV}:{VV+3}], v[{KVA}:{KVA+15}]")
                e(f"v_mfma_f32_32x32x16_bf16 v[{KVA}:{KVA+15}], v[{PK+4}:{PK+7}], v[{VV+4}:{VV+7}], v[{KVA}:{KVA+15}]")
                e.nop(15); e.nop(3)
                e("v_lshlrev_b32 v10, 4, v1"); e("s_lshl_b32 s36, s6, 12"); e(f"s_add_u32 s36, s36, {RED}"); e("v_add_u32 v10, s36, v10")
                for q in range(4): e(f"ds_write_b128 v10, v[{KVA+4*q}:{KVA+4*q+3}] offset:{q*1024}")
                e("s_waitcnt lgkmcnt(0)"); e("s_barrier")
                e("v_lshlrev_b32 v10, 4, v1"); e("s_lshr_b32 s36, s6, 1"); e("s_lshl_b32 s36, s36, 10"); e("s_and_b32 s37, s6, 1"); e("s_lshl_b32 s37, s37, 3")
                e("s_add_u32 s36, s36, s37"); e(f"s_add_u32 s36, s36, {RED}"); e("v_add_u32 v10, s36, v10")
                for w in range(8): e(f"ds_read_b64 v[{KVA+2*w}:{KVA+2*w+1}], v10 offset:{w*4096}")
                e("s_waitcnt lgkmcnt(0)")
                for w in range(1, 8):
                    for i in range(2): e(f"v_add_f32 v{KVA+i}, v{KVA+i}, v{KVA+2*w+i}")
                e("v_lshlrev_b32 v10, 6, v1"); e("s_lshl_b32 s36, s4, 16"); e("s_lshl_b32 s37, s5, 12"); e("s_add_u32 s36, s36, s37")
                e("s_lshl_b32 s37, s6, 3"); e("s_add_u32 s36, s36, s37"); e(f"s_add_u32 s36, s36, {WS_KVP}")
                e(f"buffer_store_dwordx2 v[{KVA}:{KVA+1}], v10, s[24:27], s36 offen"); e.nop(1)
            else:
                p = (u-3)//2; G0, G1 = accs[u-1], accs[u]
                for i in range(0, 16, 2):
                    a, b = G0+i, G0+i+1; c, d = G1+i, G1+i+1
                    rnd2(e, a, b, T); rnd2(e, c, d, T); silu_rnd(e, a, b, T)
                    e(f"v_mul_f32 v{a}, v{a}, v{c}"); e(f"v_mul_f32 v{b}, v{b}, v{d}")
                    e(f"v_cvt_pk_bf16_f32 v{PK+i//2}, v{a}, v{b}")
                e(f"buffer_store_dwordx4 v[{PK}:{PK+3}], v15, s[24:27], 0 offen offset:{p*64}")
                if p < 3: e(f"buffer_store_dwordx4 v[{PK+4}:{PK+7}], v15, s[24:27], 0 offen offset:{p*64+32}")
                e.nop(1)
            return e.o
        D = 4; NB = 6
        pend = []
        for idx, u in enumerate(units):
            if u >= 3: wait_for("slab", u)
            g("s_waitcnt lgkmcnt(0)"); g("s_barrier")
            nxt = units[idx+1] if idx+1 < len(units) else None
            if nxt is not None:
                if nxt >= 3: issue_slab(nxt)
                elif nxt == 2: stage_write(2)
            if u == 0: stage_load(2)
            acc = accs[u]
            for i in range(16): g(f"v_mov_b32 v{acc+i}, 0")
            g(f"v_add_u32 v2, {(idx%2)*SLAB}, v6")
            def rd(ks):
                b = BF + 4*(ks % NB)
                g(f"ds_read_b64_tr_b16 v[{b}:{b+1}], v2 offset:{ks*1024}")
                g(f"ds_read_b64_tr_b16 v[{b+2}:{b+3}], v2 offset:{ks*1024+256}")
            for ks in range(D): rd(ks)
            nslots = 27 if u < 3 or (u-3)&1 else 55
            per = -(-len(pend) // nslots) if pend else 0
            def emit(ls):
                for l in ls:
                    g.o.append(l)
                    if "buffer_store" in l: state["out"].append(("st", u, 1))
            for ks in range(28):
                if ks + D < 28: rd(ks+D)
                if idx == 0: wait_for("a", ks)
                g(f"s_waitcnt lgkmcnt({2*min(D, 27-ks)})")
                b = BF + 4*(ks % NB); a = A + 4*ks
                if u == 0 or u >= 3:
                    g(f"v_mfma_f32_32x32x16_bf16 v[{acc}:{acc+15}], v[{b}:{b+3}], v[{a}:{a+3}], v[{acc}:{acc+15}]")
                else:
                    g(f"v_mfma_f32_32x32x16_bf16 v[{acc}:{acc+15}], v[{a}:{a+3}], v[{b}:{b+3}], v[{acc}:{acc+15}]")
                if ks >= 1:
                    chunk, pend = pend[:per], pend[per:]; emit(chunk)
            if u < 3 or (u-3)&1:
                emit(pend); pend = epilogue(u)
        g.nop(15); g.nop(3)
        g.o += pend
    path([0, 1, 2, 3, 4]); g("s_branch K1_done")
    g.lab("K1_typeB"); path([5, 6, 7, 8, 9, 10])
    g.lab("K1_done"); g("s_endpgm")
    return g.o

def k2():
    g = G()
    ACC = 64; HF = 128; BF = 192; T = 224
    g("s_cmp_ge_u32 s2, 240"); g("s_cbranch_scc1 K2_done")
    g("s_load_dwordx2 s[8:9], s[0:1], 48"); g("s_load_dwordx2 s[24:25], s[0:1], 72")
    consts(g)
    g("v_and_b32 v1, 63, v0"); g("v_lshrrev_b32 v2, 6, v0"); g.nop(); g("v_readfirstlane_b32 s6, v2")
    g("s_waitcnt lgkmcnt(0)")
    srd(g, 8, 6, 1792*896); srd(g, 24, 9, 0x1000000)
    g("s_cmp_lt_u32 s2, 224"); g("s_cbranch_scc1 K2_gemm")
    g("s_cmp_lg_u32 s6, 0"); g("s_cbranch_scc1 K2_done")
    g("s_sub_u32 s4, s2, 224"); g("v_lshlrev_b32 v3, 6, v1")
    for i in range(16): g(f"v_mov_b32 v{16+i}, 0")
    for rb in range(8):
        g("s_lshl_b32 s30, s4, 12"); g(f"s_add_u32 s30, s30, {WS_KVP + rb*65536}")
        for q in range(4): g(f"buffer_load_dwordx4 v[{32+4*q}:{35+4*q}], v3, s[24:27], s30 offen offset:{q*16}")
        g("s_waitcnt vmcnt(0)")
        for i in range(16): g(f"v_add_f32 v{16+i}, v{16+i}, v{32+i}")
    for i in range(8): g(f"v_cvt_pk_bf16_f32 v{48+i}, v{16+2*i}, v{17+2*i}")
    g("v_lshlrev_b32 v3, 5, v1"); g("s_lshl_b32 s30, s4, 11"); g(f"s_add_u32 s30, s30, {WS_KV}")
    g("buffer_store_dwordx4 v[48:51], v3, s[24:27], s30 offen"); g("buffer_store_dwordx4 v[52:55], v3, s[24:27], s30 offen offset:16")
    g("s_branch K2_done")
    g.lab("K2_gemm")
    g("s_and_b32 s4, s2, 31"); g("s_lshr_b32 s5, s2, 5")
    g("v_and_b32 v3, 31, v1"); g("v_lshrrev_b32 v4, 5, v1")
    g("s_lshl_b32 s7, s4, 6"); g("v_add_u32 v5, s7, v3"); g("s_movk_i32 s30, 3584"); g("v_mul_lo_u32 v5, v5, s30")
    g("v_lshl_add_u32 v5, v4, 4, v5"); g("s_mul_i32 s30, s6, 896"); g(f"s_add_u32 s30, s30, {WS_H}"); g("v_add_u32 v5, s30, v5")
    g(f"v_add_u32 v8, {32*3584}, v5")
    g("v_lshrrev_b32 v6, 5, v1"); g("v_lshlrev_b32 v6, 9, v6")
    g("v_bfe_u32 v7, v1, 2, 2"); g("v_lshl_add_u32 v6, v7, 6, v6")
    g("v_bfe_u32 v7, v1, 4, 1"); g("v_lshl_add_u32 v6, v7, 5, v6")
    g("v_and_b32 v7, 3, v1"); g("v_lshl_add_u32 v6, v7, 3, v6"); g("s_lshl_b32 s31, s6, 14"); g("v_add_u32 v6, s31, v6")
    g("v_bfe_u32 v7, v1, 4, 1"); g("v_lshlrev_b32 v7, 3, v7"); g("v_lshrrev_b32 v9, 5, v1"); g("v_lshl_add_u32 v7, v9, 2, v7")
    g("v_bfe_u32 v9, v1, 2, 2"); g("v_add_u32 v7, v7, v9"); g("s_movk_i32 s30, 896"); g("v_mul_lo_u32 v7, v7, s30")
    g("v_and_b32 v9, 3, v1"); g("v_lshl_add_u32 v7, v9, 4, v7")
    g("s_mul_i32 s32, s6, {}".format(28*16*896)); g("s_lshl_b32 s30, s5, 7"); g("s_add_u32 s32, s32, s30")
    for i in range(64): g(f"v_mov_b32 v{ACC+i}, 0")
    P = 6
    def issue(ks):
        for un in range(2):
            g(f"s_add_u32 s30, s31, {(ks%8)*2048 + un*1024}"); g("s_mov_b32 m0, s30")
            g(f"s_add_u32 s30, s32, {ks*16*896 + un*64}")
            g(f"buffer_load_dwordx4 v7, s[8:11], s30 offen lds")
        h = HF + 8*(ks % 8)
        g(f"buffer_load_dwordx4 v[{h}:{h+3}], v5, s[24:27], 0 offen offset:{ks*32}")
        g(f"buffer_load_dwordx4 v[{h+4}:{h+7}], v8, s[24:27], 0 offen offset:{ks*32}")
    for ks in range(P): issue(ks)
    for ks in range(28):
        if ks + P < 28: issue(ks+P)
        g(f"s_waitcnt vmcnt({4*min(P, 27-ks)})")
        o = (ks%8)*2048
        for un in range(2):
            g(f"ds_read_b64_tr_b16 v[{BF+4*un}:{BF+4*un+1}], v6 offset:{o+un*1024}")
            g(f"ds_read_b64_tr_b16 v[{BF+4*un+2}:{BF+4*un+3}], v6 offset:{o+un*1024+256}")
        g("s_waitcnt lgkmcnt(0)")
        h = HF + 8*(ks % 8)
        for un in range(2):
            for t in range(2):
                a = ACC + 16*(2*un+t)
                g(f"v_mfma_f32_32x32x16_bf16 v[{a}:{a+15}], v[{BF+4*un}:{BF+4*un+3}], v[{h+4*t}:{h+4*t+3}], v[{a}:{a+15}]")
    g.nop(15); g.nop(3)
    g("s_barrier")
    g("v_lshlrev_b32 v10, 4, v1"); g("s_lshl_b32 s30, s6, 14"); g("v_add_u32 v10, s30, v10")
    for q in range(16): g(f"ds_write_b128 v10, v[{ACC+4*q}:{ACC+4*q+3}] offset:{q*1024}")
    g("s_waitcnt lgkmcnt(0)"); g("s_barrier")
    g("v_lshlrev_b32 v10, 4, v1"); g("s_lshl_b32 s30, s6, 12"); g("v_add_u32 v10, s30, v10")
    for w in range(4):
        for q in range(4): g(f"ds_read_b128 v[{ACC+16*w+4*q}:{ACC+16*w+4*q+3}], v10 offset:{w*16384+q*1024}")
    g("s_waitcnt lgkmcnt(0)")
    for w in range(1, 4):
        for i in range(16): g(f"v_add_f32 v{ACC+i}, v{ACC+i}, v{ACC+16*w+i}")
    for i in range(0, 16, 2):
        rnd2(g, ACC+i, ACC+i+1, T); silu_rnd(g, ACC+i, ACC+i+1, T)
        g(f"v_cvt_pk_bf16_f32 v{BF+i//2}, v{ACC+i}, v{ACC+i+1}")
    g("s_and_b32 s30, s6, 1"); g("s_lshl_b32 s30, s30, 5"); g("s_add_u32 s30, s30, s7"); g("v_add_u32 v10, s30, v3")
    g("s_movk_i32 s30, 896"); g("v_mul_lo_u32 v10, v10, s30"); g("v_lshl_add_u32 v10, v4, 5, v10")
    g("s_lshr_b32 s30, s6, 1"); g("s_lshl_b32 s30, s30, 6"); g("s_lshl_b32 s33, s5, 7"); g("s_add_u32 s30, s30, s33"); g(f"s_add_u32 s30, s30, {WS_G}")
    g(f"buffer_store_dwordx4 v[{BF}:{BF+3}], v10, s[24:27], s30 offen"); g(f"buffer_store_dwordx4 v[{BF+4}:{BF+7}], v10, s[24:27], s30 offen offset:16")
    g.lab("K2_done"); g("s_endpgm")
    return g.o

def k3():
    g = G()
    ACC = 64; PQF = 96; KVF = 104; BF = 112; OF = 128; T = 160; GX = 176
    OL = 0
    g("s_cmp_ge_u32 s2, 128"); g("s_cbranch_scc1 K3_done")
    g("s_load_dwordx2 s[8:9], s[0:1], 16"); g("s_load_dwordx2 s[12:13], s[0:1], 0"); g("s_load_dwordx2 s[16:17], s[0:1], 56")
    g("s_load_dwordx2 s[24:25], s[0:1], 72")
    consts(g)
    g("v_and_b32 v1, 63, v0"); g("v_lshrrev_b32 v2, 6, v0"); g.nop(); g("v_readfirstlane_b32 s6, v2")
    g("s_waitcnt lgkmcnt(0)")
    srd(g, 8, 2, 448*896); srd(g, 12, 0, 2048*896); srd(g, 16, 7, 2048*896); srd(g, 24, 9, 0x1000000)
    g("s_and_b32 s4, s2, 63"); g("s_lshr_b32 s5, s2, 6"); g("s_lshl_b32 s7, s4, 5")
    g("v_and_b32 v3, 31, v1"); g("v_lshrrev_b32 v4, 5, v1")
    g("v_add_u32 v5, s7, v3"); g("v_lshlrev_b32 v5, 10, v5"); g("v_lshl_add_u32 v5, v4, 5, v5")
    g("v_lshlrev_b32 v8, 5, v1")
    g("v_add_u32 v14, 32, v3"); g("v_lshlrev_b32 v14, 2, v14")
    g("v_lshlrev_b32 v10, 4, v1"); g(f"v_add_u32 v10, {65536}, v10")
    for hh in range(4):
        g("s_lshl_b32 s30, s6, 8"); g(f"s_add_u32 s30, s30, {hh*64}")
        g(f"buffer_load_dwordx4 v[{PQF}:{PQF+3}], v5, s[24:27], s30 offen"); g(f"buffer_load_dwordx4 v[{PQF+4}:{PQF+7}], v5, s[24:27], s30 offen offset:16")
        g("s_lshl_b32 s30, s6, 13"); g(f"s_add_u32 s30, s30, {WS_KV + hh*2048}")
        g(f"buffer_load_dwordx4 v[{KVF}:{KVF+3}], v8, s[24:27], s30 offen"); g(f"buffer_load_dwordx4 v[{KVF+4}:{KVF+7}], v8, s[24:27], s30 offen offset:16")
        for i in range(16): g(f"v_mov_b32 v{ACC+i}, 0")
        g("s_waitcnt vmcnt(0)")
        g(f"v_mfma_f32_32x32x16_bf16 v[{ACC}:{ACC+15}], v[{KVF}:{KVF+3}], v[{PQF}:{PQF+3}], v[{ACC}:{ACC+15}]")
        g(f"v_mfma_f32_32x32x16_bf16 v[{ACC}:{ACC+15}], v[{KVF+4}:{KVF+7}], v[{PQF+4}:{PQF+7}], v[{ACC}:{ACC+15}]")
        g.nop(15); g.nop(3)
        g(f"ds_bpermute_b32 v{T}, v14, v{ACC+12}"); g("s_waitcnt lgkmcnt(0)")
        rnd2(g, T, T+1, T+2); g(f"v_add_f32 v{T}, s91, v{T}"); rnd2(g, T, T+1, T+2)
        g(f"v_rcp_f32 v{T}, v{T}"); g.nop()
        for i in range(0, 16, 2):
            rnd2(g, ACC+i, ACC+i+1, T+2)
            g(f"v_mul_f32 v{ACC+i}, v{ACC+i}, v{T}"); g(f"v_mul_f32 v{ACC+i+1}, v{ACC+i+1}, v{T}")
            g(f"v_cvt_pk_bf16_f32 v{OF+i//2}, v{ACC+i}, v{ACC+i+1}")
        g("v_cmp_eq_u32 vcc, 0, v4"); g.nop(1)
        g(f"v_cndmask_b32 v{OF+6}, 0, v{OF+6}, vcc"); g(f"v_cndmask_b32 v{OF+7}, 0, v{OF+7}, vcc")
        g("s_lshl_b32 s30, s6, 13"); g(f"v_add_u32 v11, s30, v10")
        g(f"ds_write_b128 v11, v[{OF}:{OF+3}] offset:{OL+hh*2048}"); g(f"ds_write_b128 v11, v[{OF+4}:{OF+7}] offset:{OL+hh*2048+1024}")
    g("s_waitcnt lgkmcnt(0)"); g("s_barrier")
    g("v_lshrrev_b32 v6, 5, v1"); g("v_lshlrev_b32 v6, 9, v6")
    g("v_bfe_u32 v7, v1, 2, 2"); g("v_lshl_add_u32 v6, v7, 6, v6")
    g("v_bfe_u32 v7, v1, 4, 1"); g("v_lshl_add_u32 v6, v7, 5, v6")
    g("v_and_b32 v7, 3, v1"); g("v_lshl_add_u32 v6, v7, 3, v6"); g("s_lshl_b32 s31, s6, 14"); g("v_add_u32 v6, s31, v6")
    g("v_bfe_u32 v7, v1, 4, 1"); g("v_lshlrev_b32 v7, 3, v7"); g("v_lshrrev_b32 v9, 5, v1"); g("v_lshl_add_u32 v7, v9, 2, v7")
    g("v_bfe_u32 v9, v1, 2, 2"); g("v_add_u32 v7, v7, v9")
    g("v_add_u32 v12, 16, v7"); g("v_min_u32 v12, 27, v12")
    g("s_movk_i32 s30, 896"); g("v_mul_lo_u32 v7, v7, s30"); g("v_mul_lo_u32 v12, v12, s30")
    g("v_and_b32 v9, 3, v1"); g("v_lshl_add_u32 v7, v9, 4, v7"); g("v_lshl_add_u32 v12, v9, 4, v12")
    g("v_add_u32 v13, s7, v3"); g("s_movk_i32 s30, 896"); g("v_mul_lo_u32 v13, v13, s30")
    for rep in range(2):
        if rep == 1:
            g("s_cmp_eq_u32 s6, 3"); g("s_cbranch_scc1 K3_done")
        g("s_mul_i32 s33, s5, 7"); g("s_add_u32 s33, s33, s6"); g(f"s_add_u32 s33, s33, {4*rep}")
        g("s_lshl_b32 s32, s33, 6")
        for i in range(16): g(f"v_mov_b32 v{ACC+i}, 0")
        P = 6
        def issue(ks):
            g(f"s_add_u32 s30, s31, {(ks%8)*1024}"); g("s_mov_b32 m0, s30")
            g(f"s_add_u32 s30, s32, {(ks//2)*28*896}")
            g(f"buffer_load_dwordx4 v{7 if ks%2==0 else 12}, s[8:11], s30 offen lds")
        for ks in range(P): issue(ks)
        for ks in range(32):
            if ks + P < 32: issue(ks+P)
            g(f"s_waitcnt vmcnt({min(P, 31-ks)})")
            o = (ks%8)*1024
            g(f"ds_read_b64_tr_b16 v[{BF}:{BF+1}], v6 offset:{o}"); g(f"ds_read_b64_tr_b16 v[{BF+2}:{BF+3}], v6 offset:{o+256}")
            g(f"ds_read_b128 v[{BF+4}:{BF+7}], v10 offset:{OL+ks*1024}")
            g("s_waitcnt lgkmcnt(0)")
            g(f"v_mfma_f32_32x32x16_bf16 v[{ACC}:{ACC+15}], v[{BF}:{BF+3}], v[{BF+4}:{BF+7}], v[{ACC}:{ACC+15}]")
        g(f"s_add_u32 s30, s32, {WS_G}"); g("v_lshl_add_u32 v11, v4, 5, v13")
        g(f"buffer_load_dwordx4 v[{GX}:{GX+3}], v11, s[24:27], s30 offen"); g(f"buffer_load_dwordx4 v[{GX+4}:{GX+7}], v11, s[24:27], s30 offen offset:16")
        g("v_lshl_add_u32 v11, v4, 3, v13")
        for q in range(4): g(f"buffer_load_dwordx2 v[{GX+8+2*q}:{GX+9+2*q}], v11, s[12:15], s32 offen offset:{q*16}")
        g.nop(15); g("s_waitcnt vmcnt(0)")
        for i in range(0, 16, 2):
            a, b = ACC+i, ACC+i+1
            rnd2(g, a, b, T)
            g(f"v_lshlrev_b32 v{T}, 16, v{GX+i//2}"); g(f"v_and_b32 v{T+1}, 0xffff0000, v{GX+i//2}")
            g(f"v_mul_f32 v{a}, v{a}, v{T}"); g(f"v_mul_f32 v{b}, v{b}, v{T+1}")
            rnd2(g, a, b, T)
            g(f"v_lshlrev_b32 v{T}, 16, v{GX+8+i//2}"); g(f"v_and_b32 v{T+1}, 0xffff0000, v{GX+8+i//2}")
            g(f"v_add_f32 v{a}, v{a}, v{T}"); g(f"v_add_f32 v{b}, v{b}, v{T+1}")
            g(f"v_cvt_pk_bf16_f32 v{GX+8+i//2}, v{a}, v{b}")
        for q in range(4): g(f"buffer_store_dwordx2 v[{GX+8+2*q}:{GX+9+2*q}], v11, s[16:19], s32 offen offset:{q*16}")
        g("s_waitcnt vmcnt(0)")
    g.lab("K3_done"); g("s_endpgm")
    return g.o

hdr = open(f"cdna_kernels/{NAME}.s.ref").read().split("; Override")[0]
out = hdr
out += "; @launch kernel=k0_kernel grid=(512,1,1) block=(256,1,1) lds=0\n"
out += "; @launch kernel=k1_kernel grid=(256,1,1) block=(512,1,1) lds=90112\n"
out += "; @launch kernel=k2_kernel grid=(240,1,1) block=(256,1,1) lds=65536\n"
out += "; @launch kernel=k3_kernel grid=(128,1,1) block=(256,1,1) lds=98304\n"
out += '.amdgcn_target "amdgcn-amd-amdhsa--gfx950"\n.text\n'
for nm, f in (("k0_kernel", k0), ("k1_kernel", k1), ("k2_kernel", k2), ("k3_kernel", k3)):
    out += f".globl {nm}\n.p2align 8\n.type {nm},@function\n{nm}:\n" + "\n".join(f()) + "\n"
out += kdesc("k0_kernel", 32) + kdesc("k1_kernel", 256) + kdesc("k2_kernel", 256) + kdesc("k3_kernel", 256)
open(f"cdna_kernels/{NAME}.s", "w").write(out)
```

```python
import sys
NAME = "recurrent_scan__linear_attn_block__glu_gated_swiglu__prompt"
WS_PQ = 0x000000; WS_H = 0x200000; WS_KVP = 0xA00000; WS_KV = 0xB00000; WS_G = 0xC00000
L2E = 0x3fb8aa3b
EPS6 = 0x358637bd

class G:
    def __init__(s): s.o = []
    def __call__(s, t): s.o.append("    " + t)
    def lab(s, t): s.o.append(t + ":")
    def nop(s, n=0): s(f"s_nop {n}")

def srd(g, d, slot, nbytes, base_add=0):
    if base_add:
        g(f"s_add_u32 s{d}, s{d}, {base_add}"); g(f"s_addc_u32 s{d+1}, s{d+1}, 0")
    g(f"s_and_b32 s{d+1}, s{d+1}, 0xffff")
    g(f"s_mov_b32 s{d+2}, {nbytes}"); g(f"s_mov_b32 s{d+3}, 0x20000")

def rnd2(g, a, b, t):
    g(f"v_cvt_pk_bf16_f32 v{t}, v{a}, v{b}")
    g(f"v_lshlrev_b32 v{a}, 16, v{t}")
    g(f"v_and_b32 v{b}, 0xffff0000, v{t}")

def phi_pack(g, acc, out, t):
    for i in range(0, 16, 2):
        a, b = acc+i, acc+i+1
        rnd2(g, a, b, t)
        g(f"v_mul_f32 v{t}, s90, v{a}"); g(f"v_mul_f32 v{t+1}, s90, v{b}")
        g(f"v_exp_f32 v{t}, v{t}"); g(f"v_exp_f32 v{t+1}, v{t+1}")
        g(f"v_add_f32 v{t+2}, 1.0, v{a}"); g(f"v_add_f32 v{t+3}, 1.0, v{b}")
        g(f"v_cmp_lt_f32 vcc, 0, v{a}"); g.nop(1)
        g(f"v_cndmask_b32 v{a}, v{t}, v{t+2}, vcc")
        g(f"v_cmp_lt_f32 vcc, 0, v{b}"); g.nop(1)
        g(f"v_cndmask_b32 v{b}, v{t+1}, v{t+3}, vcc")
        rnd2(g, a, b, t)
        g(f"v_add_f32 v{a}, s91, v{a}"); g(f"v_add_f32 v{b}, s91, v{b}")
        g(f"v_cvt_pk_bf16_f32 v{out+i//2}, v{a}, v{b}")

def silu_rnd(g, a, b, t):
    for r, tt in ((a, t), (b, t+1)):
        g(f"v_mul_f32 v{tt}, s92, v{r}")
        g(f"v_exp_f32 v{tt}, v{tt}"); g.nop()
        g(f"v_add_f32 v{tt}, 1.0, v{tt}")
        g(f"v_rcp_f32 v{tt}, v{tt}"); g.nop()
        g(f"v_mul_f32 v{r}, v{r}, v{tt}")
    rnd2(g, a, b, t)

def consts(g):
    g(f"s_mov_b32 s90, {L2E}"); g(f"s_mov_b32 s91, {EPS6}"); g(f"s_mov_b32 s92, {L2E | 0x80000000}")

def kdesc(name, vg, sg=100):
    return f""".section .rodata,"a"
.p2align 6
.amdhsa_kernel {name}
  .amdhsa_next_free_vgpr {vg}
  .amdhsa_next_free_sgpr {sg}
  .amdhsa_accum_offset {vg}
  .amdhsa_group_segment_fixed_size 0
  .amdhsa_kernarg_size 80
  .amdhsa_user_sgpr_count 2
  .amdhsa_user_sgpr_kernarg_segment_ptr 1
  .amdhsa_system_sgpr_workgroup_id_x 1
.end_amdhsa_kernel
"""

WS_XN = 0xE00000
def k0():
    g = G()
    g("s_cmp_ge_u32 s2, 512"); g("s_cbranch_scc1 K0_done")
    g("s_load_dwordx2 s[8:9], s[0:1], 0"); g("s_load_dwordx2 s[24:25], s[0:1], 72")
    g("v_and_b32 v1, 63, v0"); g("v_lshrrev_b32 v2, 6, v0"); g.nop(); g("v_readfirstlane_b32 s6, v2")
    g("s_waitcnt lgkmcnt(0)")
    srd(g, 8, 0, 2048*896); srd(g, 24, 9, 0x1000000)
    g("s_lshl_b32 s4, s2, 2"); g("s_add_u32 s4, s4, s6")
    g("s_mul_i32 s5, s4, 896"); g("v_lshlrev_b32 v3, 4, v1")
    g("v_cmp_gt_u32 s[32:33], 56, v1")
    g("v_min_u32 v3, 880, v3")
    g("buffer_load_dwordx4 v[4:7], v3, s[8:11], s5 offen")
    g("s_waitcnt vmcnt(0)")
    for q in range(4): g(f"v_cndmask_b32 v{4+q}, 0, v{4+q}, s[32:33]")
    for q in range(4):
        g(f"v_lshlrev_b32 v{8+2*q}, 16, v{4+q}"); g(f"v_and_b32 v{9+2*q}, 0xffff0000, v{4+q}")
    def wavesum(r):
        for m in (1, 2, 4, 8, 16):
            g(f"ds_swizzle_b32 v20, v{r} offset:{(m<<10)|0x1f}"); g("s_waitcnt lgkmcnt(0)"); g(f"v_add_f32 v{r}, v{r}, v20")
        g(f"ds_bpermute_b32 v20, v21, v{r}"); g("s_waitcnt lgkmcnt(0)"); g(f"v_add_f32 v{r}, v{r}, v20")
    g("v_lshlrev_b32 v21, 2, v1"); g("v_xor_b32 v21, 128, v21")
    g("v_pk_add_f32 v[16:17], v[8:9], v[10:11]"); g("v_pk_add_f32 v[18:19], v[12:13], v[14:15]")
    g("v_pk_add_f32 v[16:17], v[16:17], v[18:19]"); g("v_add_f32 v16, v16, v17")
    wavesum(16)
    g("v_mul_f32 v16, 0x3b124925, v16"); g("v_mov_b32 v17, v16")
    for q in range(4): g(f"v_pk_add_f32 v[{24+2*q}:{25+2*q}], v[{8+2*q}:{9+2*q}], v[16:17] neg_lo:[0,1] neg_hi:[0,1]")
    g("v_pk_mul_f32 v[18:19], v[24:25], v[24:25]")
    for q in range(1, 4): g(f"v_pk_fma_f32 v[18:19], v[{24+2*q}:{25+2*q}], v[{24+2*q}:{25+2*q}], v[18:19]")
    g("v_add_f32 v18, v18, v19"); g("v_cndmask_b32 v18, 0, v18, s[32:33]")
    wavesum(18)
    g("v_mul_f32 v18, 0x3b124925, v18")
    rnd2(g, 18, 16, 22)
    g("v_add_f32 v18, 0x3727c5ac, v18"); rnd2(g, 18, 19, 22)
    g("v_sqrt_f32 v18, v18"); g.nop(); rnd2(g, 18, 19, 22)
    g("v_rcp_f32 v18, v18"); g.nop(); g("v_mov_b32 v19, v18"); g("v_mov_b32 v17, v16")
    for q in range(4):
        g(f"v_pk_add_f32 v[{8+2*q}:{9+2*q}], v[{8+2*q}:{9+2*q}], v[16:17] neg_lo:[0,1] neg_hi:[0,1]")
        g(f"v_cvt_pk_bf16_f32 v{4+q}, v{8+2*q}, v{9+2*q}")
        g(f"v_lshlrev_b32 v{8+2*q}, 16, v{4+q}"); g(f"v_and_b32 v{9+2*q}, 0xffff0000, v{4+q}")
        g(f"v_pk_mul_f32 v[{8+2*q}:{9+2*q}], v[{8+2*q}:{9+2*q}], v[18:19]")
        g(f"v_cvt_pk_bf16_f32 v{4+q}, v{8+2*q}, v{9+2*q}")
    g("v_lshrrev_b32 v3, 1, v1"); g("v_lshlrev_b32 v3, 10, v3"); g("v_and_b32 v2, 1, v1"); g("v_lshl_add_u32 v3, v2, 9, v3")
    g("s_lshr_b32 s30, s4, 5"); g("s_mul_i32 s30, s30, 28672"); g("s_and_b32 s31, s4, 31"); g("s_lshl_b32 s31, s31, 4")
    g("s_add_u32 s30, s30, s31"); g(f"s_add_u32 s30, s30, {WS_XN}")
    g("s_and_saveexec_b64 s[34:35], s[32:33]")
    g("buffer_store_dwordx4 v[4:7], v3, s[24:27], s30 offen")
    g.lab("K0_done"); g("s_endpgm")
    return g.o

def k1():
    g = G()
    A = 16; BF = 192; T = 216; PK = 224; VV = 232; KVA = 240
    SLAB = 28672; RED = 2*SLAB
    g("s_cmp_ge_u32 s2, 256"); g("s_cbranch_scc1 K1_done")
    g("s_load_dwordx2 s[12:13], s[0:1], 8")
    g("s_load_dwordx2 s[16:17], s[0:1], 32"); g("s_load_dwordx2 s[20:21], s[0:1], 40")
    g("s_load_dwordx2 s[24:25], s[0:1], 72")
    consts(g)
    g("s_bfe_u32 s4, s2, 0x30004"); g("s_and_b32 s5, s2, 15")
    g("v_and_b32 v1, 63, v0"); g("v_lshrrev_b32 v2, 6, v0")
    g.nop(); g("v_readfirstlane_b32 s6, v2")
    g("s_waitcnt lgkmcnt(0)")
    srd(g, 12, 1, 448*2688); srd(g, 16, 4, 448*3584); srd(g, 20, 5, 448*3584); srd(g, 24, 9, 0x1000000)
    g("s_lshl_b32 s7, s4, 8"); g("s_lshl_b32 s30, s6, 5"); g("s_add_u32 s7, s7, s30")
    g("v_and_b32 v3, 31, v1"); g("v_lshrrev_b32 v4, 5, v1")
    g("v_lshlrev_b32 v5, 4, v1")
    g("v_lshrrev_b32 v6, 5, v1"); g("v_lshlrev_b32 v6, 9, v6")
    g("v_bfe_u32 v7, v1, 2, 2"); g("v_lshl_add_u32 v6, v7, 6, v6")
    g("v_bfe_u32 v7, v1, 4, 1"); g("v_lshl_add_u32 v6, v7, 5, v6")
    g("v_and_b32 v7, 3, v1"); g("v_lshl_add_u32 v6, v7, 3, v6")
    g("v_lshrrev_b32 v7, 4, v1"); g("v_lshlrev_b32 v7, 2, v7"); g("v_bfe_u32 v8, v1, 2, 2"); g("v_add_u32 v7, v7, v8")
    g("s_movk_i32 s30, 3584"); g("v_mul_lo_u32 v7, v7, s30"); g("v_and_b32 v8, 3, v1"); g("v_lshl_add_u32 v7, v8, 4, v7")
    g("v_add_u32 v8, s7, v3")
    g("v_lshlrev_b32 v9, 10, v8"); g("v_lshl_add_u32 v9, v4, 5, v9"); g("s_lshl_b32 s30, s5, 6"); g("v_add_u32 v9, s30, v9")
    g("s_movk_i32 s30, 3584"); g("v_mul_lo_u32 v15, v8, s30"); g("v_lshl_add_u32 v15, v4, 4, v15")
    g("s_mul_i32 s30, s5, 224"); g(f"s_add_u32 s30, s30, {WS_H}"); g("v_add_u32 v15, s30, v15")
    g("s_mul_i32 s35, s5, 224")
    g("s_cmp_ge_u32 s2, 128"); g("s_cbranch_scc1 K1_typeB")
    accs = {0:128, 1:160, 2:128, 3:160, 4:176, 5:128, 6:144, 7:160, 8:176, 9:128, 10:144}
    def path(units):
        state = {"out": []}
        def load_a():
            g("s_lshr_b32 s30, s7, 5"); g("s_mul_i32 s30, s30, 28672"); g(f"s_add_u32 s30, s30, {WS_XN}")
            for k4 in range(7):
                for q in range(4):
                    ks = 4*k4+q
                    g(f"buffer_load_dwordx4 v[{A+4*ks}:{A+4*ks+3}], v5, s[24:27], s30 offen offset:{q*1024}")
                    state["out"].append(("a", ks, 1))
                g("s_add_u32 s30, s30, 4096")
        pos = {u: i for i, u in enumerate(units)}
        def issue_slab(u):
            p, wh = (u-3)//2, (u-3)&1
            sr = 16 if wh == 0 else 20
            for q in range(4):
                if q < 3: g(f"s_add_u32 s38, s6, {8*q}")
                else: g("s_and_b32 s38, s6, 3"); g("s_add_u32 s38, s38, 24")
                g(f"s_lshl_b32 s30, s38, 10"); g(f"s_add_u32 s30, s30, {(pos[u]%2)*SLAB}"); g("s_mov_b32 m0, s30")
                g(f"s_mul_i32 s30, s38, {16*3584}"); g(f"s_add_u32 s30, s30, {p*64}"); g("s_add_u32 s30, s30, s35")
                g(f"buffer_load_dwordx4 v7, s[{sr}:{sr+3}], s30 offen lds")
            state["out"].append(("slab", u, 4))
        def wait_for(kind, u):
            n = 0; found = False
            for it in state["out"]:
                if found: n += it[2]
                if it[0] == kind and it[1] == u: found = True
            if found: g(f"s_waitcnt vmcnt({n})")
        stv = list(range(144, 160)) + list(range(176, 188))
        def stregs(u):
            return [(128+14*u+2*it) for it in range(7)] if u < 2 else [stv[2*it] for it in range(7)]
        def stage_load(u):
            g(f"s_add_u32 s30, s31, {u*896}")
            for it, rr in enumerate(stregs(u)):
                g(f"s_add_u32 s34, s30, {it*64*2688}")
                g(f"buffer_load_dwordx2 v[{rr}:{rr+1}], v8, s[12:15], s34 offen")
            state["out"].append(("stg", u, 7))
        def stage_write(u):
            wait_for("stg", u)
            g(f"v_add_u32 v11, {(u%2)*SLAB}, v10")
            for it, rr in enumerate(stregs(u)):
                g(f"v_cndmask_b32 v{rr}, v{rr}, 0, s[32:33]"); g(f"v_cndmask_b32 v{rr+1}, v{rr+1}, 0, s[32:33]")
                g(f"ds_write_b64 v11, v[{rr}:{rr+1}] offset:{it*4096}")
        if 0 in pos:
            g("v_lshrrev_b32 v12, 3, v0"); g("v_and_b32 v13, 7, v0")
            g("s_movk_i32 s30, 2688"); g("v_mul_lo_u32 v8, v12, s30"); g("v_lshl_add_u32 v8, v13, 3, v8")
            g("s_mul_i32 s31, s5, 56")
            g("v_lshrrev_b32 v10, 2, v12"); g("v_lshlrev_b32 v10, 8, v10"); g("v_and_b32 v11, 3, v12")
            g("v_lshl_add_u32 v10, v11, 6, v10"); g("v_lshl_add_u32 v10, v13, 3, v10")
            g("v_cmp_eq_u32 s[32:33], 7, v13")
            stage_load(0); stage_load(1); load_a(); stage_write(0); stage_write(1)
        else:
            issue_slab(units[0]); load_a()
        def epilogue(u):
            e = G()
            if u == 0:
                phi_pack(e, accs[0], PK, T)
                e(f"buffer_store_dwordx4 v[{PK}:{PK+3}], v9, s[24:27], 0 offen")
                e(f"buffer_store_dwordx4 v[{PK+4}:{PK+7}], v9, s[24:27], 0 offen offset:16"); e.nop(1)
            elif u == 1:
                phi_pack(e, accs[1], PK, T)
                e("v_cmp_gt_u32 vcc, 28, v3"); e.nop(1)
                for i in range(8): e(f"v_cndmask_b32 v{PK+i}, 0, v{PK+i}, vcc")
            elif u == 2:
                ac = accs[2]
                for i in range(8): e(f"v_cvt_pk_bf16_f32 v{VV+i}, v{ac+2*i}, v{ac+2*i+1}")
                e("v_cmp_eq_u32 vcc, 28, v3"); e(f"v_mov_b32 v{T}, 0x3f803f80"); e.nop(1)
                for i in range(8): e(f"v_cndmask_b32 v{VV+i}, v{VV+i}, v{T}, vcc")
                for i in range(16): e(f"v_mov_b32 v{KVA+i}, 0")
                e.nop(1)
                e(f"v_mfma_f32_32x32x16_bf16 v[{KVA}:{KVA+15}], v[{PK}:{PK+3}], v[{VV}:{VV+3}], v[{KVA}:{KVA+15}]")
                e(f"v_mfma_f32_32x32x16_bf16 v[{KVA}:{KVA+15}], v[{PK+4}:{PK+7}], v[{VV+4}:{VV+7}], v[{KVA}:{KVA+15}]")
                e.nop(15); e.nop(3)
                e("v_lshlrev_b32 v10, 4, v1"); e("s_lshl_b32 s36, s6, 12"); e(f"s_add_u32 s36, s36, {RED}"); e("v_add_u32 v10, s36, v10")
                for q in range(4): e(f"ds_write_b128 v10, v[{KVA+4*q}:{KVA+4*q+3}] offset:{q*1024}")
                e("s_waitcnt lgkmcnt(0)"); e("s_barrier")
                e("v_lshlrev_b32 v10, 4, v1"); e("s_lshr_b32 s36, s6, 1"); e("s_lshl_b32 s36, s36, 10"); e("s_and_b32 s37, s6, 1"); e("s_lshl_b32 s37, s37, 3")
                e("s_add_u32 s36, s36, s37"); e(f"s_add_u32 s36, s36, {RED}"); e("v_add_u32 v10, s36, v10")
                for w in range(8): e(f"ds_read_b64 v[{KVA+2*w}:{KVA+2*w+1}], v10 offset:{w*4096}")
                e("s_waitcnt lgkmcnt(0)")
                for w in range(1, 8):
                    for i in range(2): e(f"v_add_f32 v{KVA+i}, v{KVA+i}, v{KVA+2*w+i}")
                e("v_lshlrev_b32 v10, 6, v1"); e("s_lshl_b32 s36, s4, 16"); e("s_lshl_b32 s37, s5, 12"); e("s_add_u32 s36, s36, s37")
                e("s_lshl_b32 s37, s6, 3"); e("s_add_u32 s36, s36, s37"); e(f"s_add_u32 s36, s36, {WS_KVP}")
                e(f"buffer_store_dwordx2 v[{KVA}:{KVA+1}], v10, s[24:27], s36 offen"); e.nop(1)
            else:
                p = (u-3)//2; G0, G1 = accs[u-1], accs[u]
                for i in range(0, 16, 2):
                    a, b = G0+i, G0+i+1; c, d = G1+i, G1+i+1
                    rnd2(e, a, b, T); rnd2(e, c, d, T); silu_rnd(e, a, b, T)
                    e(f"v_mul_f32 v{a}, v{a}, v{c}"); e(f"v_mul_f32 v{b}, v{b}, v{d}")
                    e(f"v_cvt_pk_bf16_f32 v{PK+i//2}, v{a}, v{b}")
                e(f"buffer_store_dwordx4 v[{PK}:{PK+3}], v15, s[24:27], 0 offen offset:{p*64}")
                if p < 3: e(f"buffer_store_dwordx4 v[{PK+4}:{PK+7}], v15, s[24:27], 0 offen offset:{p*64+32}")
                e.nop(1)
            return e.o
        D = 4; NB = 6
        pend = []
        for idx, u in enumerate(units):
            if u >= 3: wait_for("slab", u)
            g("s_waitcnt lgkmcnt(0)"); g("s_barrier")
            nxt = units[idx+1] if idx+1 < len(units) else None
            if nxt is not None:
                if nxt >= 3: issue_slab(nxt)
                elif nxt == 2: stage_write(2)
            if u == 0: stage_load(2)
            acc = accs[u]
            for i in range(16): g(f"v_mov_b32 v{acc+i}, 0")
            g(f"v_add_u32 v2, {(idx%2)*SLAB}, v6")
            def rd(ks):
                b = BF + 4*(ks % NB)
                g(f"ds_read_b64_tr_b16 v[{b}:{b+1}], v2 offset:{ks*1024}")
                g(f"ds_read_b64_tr_b16 v[{b+2}:{b+3}], v2 offset:{ks*1024+256}")
            for ks in range(D): rd(ks)
            nslots = 27 if u < 3 or (u-3)&1 else 55
            per = -(-len(pend) // nslots) if pend else 0
            def emit(ls):
                for l in ls:
                    g.o.append(l)
                    if "buffer_store" in l: state["out"].append(("st", u, 1))
            for ks in range(28):
                if ks + D < 28: rd(ks+D)
                if idx == 0: wait_for("a", ks)
                g(f"s_waitcnt lgkmcnt({2*min(D, 27-ks)})")
                b = BF + 4*(ks % NB); a = A + 4*ks
                if u == 0 or u >= 3:
                    g(f"v_mfma_f32_32x32x16_bf16 v[{acc}:{acc+15}], v[{b}:{b+3}], v[{a}:{a+3}], v[{acc}:{acc+15}]")
                else:
                    g(f"v_mfma_f32_32x32x16_bf16 v[{acc}:{acc+15}], v[{a}:{a+3}], v[{b}:{b+3}], v[{acc}:{acc+15}]")
                if ks >= 1:
                    chunk, pend = pend[:per], pend[per:]; emit(chunk)
            if u < 3 or (u-3)&1:
                emit(pend); pend = epilogue(u)
        g.nop(15); g.nop(3)
        g.o += pend
    path([0, 1, 2, 3, 4]); g("s_branch K1_done")
    g.lab("K1_typeB"); path([5, 6, 7, 8, 9, 10])
    g.lab("K1_done"); g("s_endpgm")
    return g.o

def k2():
    g = G()
    ACC = 64; HF = 128; BF = 192; T = 224
    g("s_cmp_ge_u32 s2, 240"); g("s_cbranch_scc1 K2_done")
    g("s_load_dwordx2 s[8:9], s[0:1], 48"); g("s_load_dwordx2 s[24:25], s[0:1], 72")
    consts(g)
    g("v_and_b32 v1, 63, v0"); g("v_lshrrev_b32 v2, 6, v0"); g.nop(); g("v_readfirstlane_b32 s6, v2")
    g("s_waitcnt lgkmcnt(0)")
    srd(g, 8, 6, 1792*896); srd(g, 24, 9, 0x1000000)
    g("s_cmp_lt_u32 s2, 224"); g("s_cbranch_scc1 K2_gemm")
    g("s_cmp_lg_u32 s6, 0"); g("s_cbranch_scc1 K2_done")
    g("s_sub_u32 s4, s2, 224"); g("v_lshlrev_b32 v3, 6, v1")
    for i in range(16): g(f"v_mov_b32 v{16+i}, 0")
    for rb in range(8):
        g("s_lshl_b32 s30, s4, 12"); g(f"s_add_u32 s30, s30, {WS_KVP + rb*65536}")
        for q in range(4): g(f"buffer_load_dwordx4 v[{64+16*rb+4*q}:{67+16*rb+4*q}], v3, s[24:27], s30 offen offset:{q*16}")
    g("s_waitcnt vmcnt(0)")
    for rb in range(8):
        for i in range(16): g(f"v_add_f32 v{16+i}, v{16+i}, v{64+16*rb+i}")
    for i in range(8): g(f"v_cvt_pk_bf16_f32 v{48+i}, v{16+2*i}, v{17+2*i}")
    g("v_lshlrev_b32 v3, 5, v1"); g("s_lshl_b32 s30, s4, 11"); g(f"s_add_u32 s30, s30, {WS_KV}")
    g("buffer_store_dwordx4 v[48:51], v3, s[24:27], s30 offen"); g("buffer_store_dwordx4 v[52:55], v3, s[24:27], s30 offen offset:16")
    g("s_branch K2_done")
    g.lab("K2_gemm")
    g("s_and_b32 s4, s2, 31"); g("s_lshr_b32 s5, s2, 5")
    g("v_and_b32 v3, 31, v1"); g("v_lshrrev_b32 v4, 5, v1")
    g("s_lshl_b32 s7, s4, 6"); g("v_add_u32 v5, s7, v3"); g("s_movk_i32 s30, 3584"); g("v_mul_lo_u32 v5, v5, s30")
    g("v_lshl_add_u32 v5, v4, 4, v5"); g("s_mul_i32 s30, s6, 448"); g(f"s_add_u32 s30, s30, {WS_H}"); g("v_add_u32 v5, s30, v5")
    g(f"v_add_u32 v8, {32*3584}, v5")
    g("v_lshrrev_b32 v6, 5, v1"); g("v_lshlrev_b32 v6, 9, v6")
    g("v_bfe_u32 v7, v1, 2, 2"); g("v_lshl_add_u32 v6, v7, 6, v6")
    g("v_bfe_u32 v7, v1, 4, 1"); g("v_lshl_add_u32 v6, v7, 5, v6")
    g("v_and_b32 v7, 3, v1"); g("v_lshl_add_u32 v6, v7, 3, v6"); g("s_lshl_b32 s31, s6, 14"); g("v_add_u32 v6, s31, v6")
    g("v_bfe_u32 v7, v1, 4, 1"); g("v_lshlrev_b32 v7, 3, v7"); g("v_lshrrev_b32 v9, 5, v1"); g("v_lshl_add_u32 v7, v9, 2, v7")
    g("v_bfe_u32 v9, v1, 2, 2"); g("v_add_u32 v7, v7, v9"); g("s_movk_i32 s30, 896"); g("v_mul_lo_u32 v7, v7, s30")
    g("v_and_b32 v9, 3, v1"); g("v_lshl_add_u32 v7, v9, 4, v7")
    g("s_mul_i32 s32, s6, {}".format(14*16*896)); g("s_lshl_b32 s30, s5, 7"); g("s_add_u32 s32, s32, s30")
    for i in range(64): g(f"v_mov_b32 v{ACC+i}, 0")
    P = 7
    def issue(ks):
        for un in range(2):
            g(f"s_add_u32 s30, s31, {(ks%8)*2048 + un*1024}"); g("s_mov_b32 m0, s30")
            g(f"s_add_u32 s30, s32, {ks*16*896 + un*64}")
            g(f"buffer_load_dwordx4 v7, s[8:11], s30 offen lds")
        h = HF + 8*(ks % 8)
        g(f"buffer_load_dwordx4 v[{h}:{h+3}], v5, s[24:27], 0 offen offset:{ks*32}")
        g(f"buffer_load_dwordx4 v[{h+4}:{h+7}], v8, s[24:27], 0 offen offset:{ks*32}")
    for ks in range(P): issue(ks)
    for ks in range(14):
        if ks + P < 14: issue(ks+P)
        g(f"s_waitcnt vmcnt({4*min(P, 13-ks)})")
        o = (ks%8)*2048
        for un in range(2):
            g(f"ds_read_b64_tr_b16 v[{BF+4*un}:{BF+4*un+1}], v6 offset:{o+un*1024}")
            g(f"ds_read_b64_tr_b16 v[{BF+4*un+2}:{BF+4*un+3}], v6 offset:{o+un*1024+256}")
        g("s_waitcnt lgkmcnt(0)")
        h = HF + 8*(ks % 8)
        for un in range(2):
            for t in range(2):
                a = ACC + 16*(2*un+t)
                g(f"v_mfma_f32_32x32x16_bf16 v[{a}:{a+15}], v[{BF+4*un}:{BF+4*un+3}], v[{h+4*t}:{h+4*t+3}], v[{a}:{a+15}]")
    g.nop(15); g.nop(3)
    g("s_barrier")
    g("v_lshlrev_b32 v10, 4, v1"); g("s_lshl_b32 s30, s6, 14"); g("v_add_u32 v10, s30, v10")
    for q in range(16): g(f"ds_write_b128 v10, v[{ACC+4*q}:{ACC+4*q+3}] offset:{q*1024}")
    g("s_waitcnt lgkmcnt(0)"); g("s_barrier")
    g("v_lshlrev_b32 v10, 4, v1"); g("s_lshr_b32 s30, s6, 1"); g("s_lshl_b32 s30, s30, 12"); g("s_and_b32 s33, s6, 1"); g("s_lshl_b32 s33, s33, 11")
    g("s_add_u32 s30, s30, s33"); g("v_add_u32 v10, s30, v10"); g("v_add_u32 v11, 0x10000, v10")
    for w in range(8):
        for q in range(2): g(f"ds_read_b128 v[{ACC+8*w+4*q}:{ACC+8*w+4*q+3}], v{10 if w < 4 else 11} offset:{(w%4)*16384+q*1024}")
    g("s_waitcnt lgkmcnt(0)")
    for w in range(1, 8):
        for i in range(8): g(f"v_add_f32 v{ACC+i}, v{ACC+i}, v{ACC+8*w+i}")
    for i in range(0, 8, 2):
        rnd2(g, ACC+i, ACC+i+1, T); silu_rnd(g, ACC+i, ACC+i+1, T)
        g(f"v_cvt_pk_bf16_f32 v{BF+i//2}, v{ACC+i}, v{ACC+i+1}")
    g("s_bfe_u32 s30, s6, 0x10001"); g("s_lshl_b32 s30, s30, 5"); g("s_add_u32 s30, s30, s7"); g("v_add_u32 v10, s30, v3")
    g("s_movk_i32 s30, 896"); g("v_mul_lo_u32 v10, v10, s30"); g("v_lshl_add_u32 v10, v4, 5, v10")
    g("s_lshr_b32 s30, s6, 2"); g("s_lshl_b32 s30, s30, 6"); g("s_lshl_b32 s33, s5, 7"); g("s_add_u32 s30, s30, s33"); g(f"s_add_u32 s30, s30, {WS_G}")
    g("s_and_b32 s33, s6, 1"); g("s_lshl_b32 s33, s33, 4"); g("s_add_u32 s30, s30, s33")
    g(f"buffer_store_dwordx4 v[{BF}:{BF+3}], v10, s[24:27], s30 offen")
    g.lab("K2_done"); g("s_endpgm")
    return g.o

def k3():
    g = G()
    ACC = 64; PQF = 96; KVF = 112; BF = 128; OF = 144; T = 160; GX = 176
    g("s_cmp_ge_u32 s2, 128"); g("s_cbranch_scc1 K3_done")
    g("s_load_dwordx2 s[8:9], s[0:1], 16"); g("s_load_dwordx2 s[12:13], s[0:1], 0"); g("s_load_dwordx2 s[16:17], s[0:1], 56")
    g("s_load_dwordx2 s[24:25], s[0:1], 72")
    consts(g)
    g("v_and_b32 v1, 63, v0"); g("v_lshrrev_b32 v2, 6, v0"); g.nop(); g("v_readfirstlane_b32 s6, v2")
    g("s_waitcnt lgkmcnt(0)")
    srd(g, 8, 2, 448*896); srd(g, 12, 0, 2048*896); srd(g, 16, 7, 2048*896); srd(g, 24, 9, 0x1000000)
    g("s_and_b32 s4, s2, 63"); g("s_lshr_b32 s5, s2, 6"); g("s_lshl_b32 s7, s4, 5")
    g("v_and_b32 v3, 31, v1"); g("v_lshrrev_b32 v4, 5, v1")
    g("v_add_u32 v5, s7, v3"); g("v_lshlrev_b32 v5, 10, v5"); g("v_lshl_add_u32 v5, v4, 5, v5")
    g("v_lshlrev_b32 v8, 5, v1")
    g("v_add_u32 v14, 32, v3"); g("v_lshlrev_b32 v14, 2, v14")
    g("v_lshlrev_b32 v10, 4, v1"); g(f"v_add_u32 v10, {8*16384}, v10")
    for hh in range(2):
        g("s_lshl_b32 s30, s6, 7"); g(f"s_add_u32 s30, s30, {hh*64}")
        g(f"buffer_load_dwordx4 v[{PQF+8*hh}:{PQF+8*hh+3}], v5, s[24:27], s30 offen"); g(f"buffer_load_dwordx4 v[{PQF+8*hh+4}:{PQF+8*hh+7}], v5, s[24:27], s30 offen offset:16")
        g("s_lshl_b32 s30, s6, 12"); g(f"s_add_u32 s30, s30, {WS_KV + hh*2048}")
        g(f"buffer_load_dwordx4 v[{KVF+8*hh}:{KVF+8*hh+3}], v8, s[24:27], s30 offen"); g(f"buffer_load_dwordx4 v[{KVF+8*hh+4}:{KVF+8*hh+7}], v8, s[24:27], s30 offen offset:16")
    g("v_lshrrev_b32 v6, 5, v1"); g("v_lshlrev_b32 v6, 9, v6")
    g("v_bfe_u32 v7, v1, 2, 2"); g("v_lshl_add_u32 v6, v7, 6, v6")
    g("v_bfe_u32 v7, v1, 4, 1"); g("v_lshl_add_u32 v6, v7, 5, v6")
    g("v_and_b32 v7, 3, v1"); g("v_lshl_add_u32 v6, v7, 3, v6"); g("s_lshl_b32 s31, s6, 14"); g("v_add_u32 v6, s31, v6")
    g("v_bfe_u32 v7, v1, 4, 1"); g("v_lshlrev_b32 v7, 3, v7"); g("v_lshrrev_b32 v9, 5, v1"); g("v_lshl_add_u32 v7, v9, 2, v7")
    g("v_bfe_u32 v9, v1, 2, 2"); g("v_add_u32 v7, v7, v9")
    g("v_add_u32 v12, 16, v7"); g("v_min_u32 v12, 27, v12")
    g("s_movk_i32 s30, 896"); g("v_mul_lo_u32 v7, v7, s30"); g("v_mul_lo_u32 v12, v12, s30")
    g("v_and_b32 v9, 3, v1"); g("v_lshl_add_u32 v7, v9, 4, v7"); g("v_lshl_add_u32 v12, v9, 4, v12")
    g("v_add_u32 v13, s7, v3"); g("s_movk_i32 s30, 896"); g("v_mul_lo_u32 v13, v13, s30")
    g("s_min_u32 s34, s6, 6")
    g("s_mul_i32 s33, s5, 7"); g("s_add_u32 s33, s33, s34"); g("s_lshl_b32 s32, s33, 6")
    g(f"s_add_u32 s30, s32, {WS_G}"); g("v_lshl_add_u32 v11, v4, 5, v13")
    g(f"buffer_load_dwordx4 v[{GX}:{GX+3}], v11, s[24:27], s30 offen"); g(f"buffer_load_dwordx4 v[{GX+4}:{GX+7}], v11, s[24:27], s30 offen offset:16")
    g("v_lshl_add_u32 v11, v4, 3, v13")
    for q in range(4): g(f"buffer_load_dwordx2 v[{GX+8+2*q}:{GX+9+2*q}], v11, s[12:15], s32 offen offset:{q*16}")
    P = 15
    def issue(ks):
        g(f"s_add_u32 s30, s31, {(ks%16)*1024}"); g("s_mov_b32 m0, s30")
        g(f"s_add_u32 s30, s32, {(ks//2)*28*896}")
        g(f"buffer_load_dwordx4 v{7 if ks%2==0 else 12}, s[8:11], s30 offen lds")
    for ks in range(P): issue(ks)
    g(f"s_waitcnt vmcnt({6+P})")
    for hh in range(2):
        a = ACC + 16*hh
        for i in range(16): g(f"v_mov_b32 v{a+i}, 0")
        g.nop(1)
        g(f"v_mfma_f32_32x32x16_bf16 v[{a}:{a+15}], v[{KVF+8*hh}:{KVF+8*hh+3}], v[{PQF+8*hh}:{PQF+8*hh+3}], v[{a}:{a+15}]")
        g(f"v_mfma_f32_32x32x16_bf16 v[{a}:{a+15}], v[{KVF+8*hh+4}:{KVF+8*hh+7}], v[{PQF+8*hh+4}:{PQF+8*hh+7}], v[{a}:{a+15}]")
    g.nop(15); g.nop(3)
    for hh in range(2):
        a = ACC + 16*hh
        g(f"ds_bpermute_b32 v{T}, v14, v{a+12}"); g("s_waitcnt lgkmcnt(0)")
        rnd2(g, T, T+1, T+2); g(f"v_add_f32 v{T}, s91, v{T}"); rnd2(g, T, T+1, T+2)
        g(f"v_rcp_f32 v{T}, v{T}"); g.nop()
        for i in range(0, 16, 2):
            rnd2(g, a+i, a+i+1, T+2)
            g(f"v_mul_f32 v{a+i}, v{a+i}, v{T}"); g(f"v_mul_f32 v{a+i+1}, v{a+i+1}, v{T}")
            g(f"v_cvt_pk_bf16_f32 v{OF+i//2}, v{a+i}, v{a+i+1}")
        g("v_cmp_eq_u32 vcc, 0, v4"); g.nop(1)
        g(f"v_cndmask_b32 v{OF+6}, 0, v{OF+6}, vcc"); g(f"v_cndmask_b32 v{OF+7}, 0, v{OF+7}, vcc")
        g("s_lshl_b32 s30, s6, 12"); g(f"v_add_u32 v15, s30, v10")
        g(f"ds_write_b128 v15, v[{OF}:{OF+3}] offset:{hh*2048}"); g(f"ds_write_b128 v15, v[{OF+4}:{OF+7}] offset:{hh*2048+1024}")
    g("s_waitcnt lgkmcnt(0)"); g("s_barrier")
    g("s_cmp_eq_u32 s6, 7"); g("s_cbranch_scc1 K3_done")
    for i in range(16): g(f"v_mov_b32 v{ACC+i}, 0")
    for ks in range(32):
        if ks + P < 32: issue(ks+P)
        g(f"s_waitcnt vmcnt({min(P, 31-ks)})")
        o = (ks%16)*1024; b = BF + 8*(ks%2)
        g(f"ds_read_b64_tr_b16 v[{b}:{b+1}], v6 offset:{o}"); g(f"ds_read_b64_tr_b16 v[{b+2}:{b+3}], v6 offset:{o+256}")
        g(f"ds_read_b128 v[{b+4}:{b+7}], v10 offset:{ks*1024}")
        g("s_waitcnt lgkmcnt(0)")
        g(f"v_mfma_f32_32x32x16_bf16 v[{ACC}:{ACC+15}], v[{b}:{b+3}], v[{b+4}:{b+7}], v[{ACC}:{ACC+15}]")
    g.nop(15); g.nop(3)
    for i in range(0, 16, 2):
        a, b = ACC+i, ACC+i+1
        rnd2(g, a, b, T)
        g(f"v_lshlrev_b32 v{T}, 16, v{GX+i//2}"); g(f"v_and_b32 v{T+1}, 0xffff0000, v{GX+i//2}")
        g(f"v_mul_f32 v{a}, v{a}, v{T}"); g(f"v_mul_f32 v{b}, v{b}, v{T+1}")
        rnd2(g, a, b, T)
        g(f"v_lshlrev_b32 v{T}, 16, v{GX+8+i//2}"); g(f"v_and_b32 v{T+1}, 0xffff0000, v{GX+8+i//2}")
        g(f"v_add_f32 v{a}, v{a}, v{T}"); g(f"v_add_f32 v{b}, v{b}, v{T+1}")
        g(f"v_cvt_pk_bf16_f32 v{GX+8+i//2}, v{a}, v{b}")
    for q in range(4): g(f"buffer_store_dwordx2 v[{GX+8+2*q}:{GX+9+2*q}], v11, s[16:19], s32 offen offset:{q*16}")
    g.lab("K3_done"); g("s_endpgm")
    return g.o

hdr = open(f"cdna_kernels/{NAME}.s.ref").read().split("; Override")[0]
out = hdr
out += "; @launch kernel=k0_kernel grid=(512,1,1) block=(256,1,1) lds=0\n"
out += "; @launch kernel=k1_kernel grid=(256,1,1) block=(512,1,1) lds=90112\n"
out += "; @launch kernel=k2_kernel grid=(240,1,1) block=(512,1,1) lds=131072\n"
out += "; @launch kernel=k3_kernel grid=(128,1,1) block=(512,1,1) lds=163840\n"
out += '.amdgcn_target "amdgcn-amd-amdhsa--gfx950"\n.text\n'
for nm, f in (("k0_kernel", k0), ("k1_kernel", k1), ("k2_kernel", k2), ("k3_kernel", k3)):
    out += f".globl {nm}\n.p2align 8\n.type {nm},@function\n{nm}:\n" + "\n".join(f()) + "\n"
out += kdesc("k0_kernel", 32) + kdesc("k1_kernel", 256) + kdesc("k2_kernel", 256) + kdesc("k3_kernel", 256)
open(f"cdna_kernels/{NAME}.s", "w").write(out)
```

```python
import sys
NAME = "recurrent_scan__linear_attn_block__glu_gated_swiglu__prompt"
WS_PQ = 0x000000; WS_H = 0x200000; WS_KVP = 0xA00000; WS_KV = 0xB00000; WS_G = 0xC00000
L2E = 0x3fb8aa3b
EPS6 = 0x358637bd

class G:
    def __init__(s): s.o = []
    def __call__(s, t): s.o.append("    " + t)
    def lab(s, t): s.o.append(t + ":")
    def nop(s, n=0): s(f"s_nop {n}")

def srd(g, d, slot, nbytes, base_add=0):
    if base_add:
        g(f"s_add_u32 s{d}, s{d}, {base_add}"); g(f"s_addc_u32 s{d+1}, s{d+1}, 0")
    g(f"s_and_b32 s{d+1}, s{d+1}, 0xffff")
    g(f"s_mov_b32 s{d+2}, {nbytes}"); g(f"s_mov_b32 s{d+3}, 0x20000")

def rnd2(g, a, b, t):
    g(f"v_cvt_pk_bf16_f32 v{t}, v{a}, v{b}")
    g(f"v_lshlrev_b32 v{a}, 16, v{t}")
    g(f"v_and_b32 v{b}, 0xffff0000, v{t}")

def phi_pack(g, acc, out, t):
    for i in range(0, 16, 2):
        a, b = acc+i, acc+i+1
        rnd2(g, a, b, t)
        g(f"v_mul_f32 v{t}, s90, v{a}"); g(f"v_mul_f32 v{t+1}, s90, v{b}")
        g(f"v_exp_f32 v{t}, v{t}"); g(f"v_exp_f32 v{t+1}, v{t+1}")
        g(f"v_add_f32 v{t+2}, 1.0, v{a}"); g(f"v_add_f32 v{t+3}, 1.0, v{b}")
        g(f"v_cmp_lt_f32 vcc, 0, v{a}"); g.nop(1)
        g(f"v_cndmask_b32 v{a}, v{t}, v{t+2}, vcc")
        g(f"v_cmp_lt_f32 vcc, 0, v{b}"); g.nop(1)
        g(f"v_cndmask_b32 v{b}, v{t+1}, v{t+3}, vcc")
        rnd2(g, a, b, t)
        g(f"v_add_f32 v{a}, s91, v{a}"); g(f"v_add_f32 v{b}, s91, v{b}")
        g(f"v_cvt_pk_bf16_f32 v{out+i//2}, v{a}, v{b}")

def silu_rnd(g, a, b, t):
    for r, tt in ((a, t), (b, t+1)):
        g(f"v_mul_f32 v{tt}, s92, v{r}")
        g(f"v_exp_f32 v{tt}, v{tt}"); g.nop()
        g(f"v_add_f32 v{tt}, 1.0, v{tt}")
        g(f"v_rcp_f32 v{tt}, v{tt}"); g.nop()
        g(f"v_mul_f32 v{r}, v{r}, v{tt}")
    rnd2(g, a, b, t)

def consts(g):
    g(f"s_mov_b32 s90, {L2E}"); g(f"s_mov_b32 s91, {EPS6}"); g(f"s_mov_b32 s92, {L2E | 0x80000000}")

def kdesc(name, vg, sg=100):
    return f""".section .rodata,"a"
.p2align 6
.amdhsa_kernel {name}
  .amdhsa_next_free_vgpr {vg}
  .amdhsa_next_free_sgpr {sg}
  .amdhsa_accum_offset {vg}
  .amdhsa_group_segment_fixed_size 0
  .amdhsa_kernarg_size 80
  .amdhsa_user_sgpr_count 2
  .amdhsa_user_sgpr_kernarg_segment_ptr 1
  .amdhsa_system_sgpr_workgroup_id_x 1
.end_amdhsa_kernel
"""

WS_XN = 0xE00000
def k0():
    g = G()
    g("s_cmp_ge_u32 s2, 512"); g("s_cbranch_scc1 K0_done")
    g("s_load_dwordx2 s[8:9], s[0:1], 0"); g("s_load_dwordx2 s[24:25], s[0:1], 72")
    g("v_and_b32 v1, 63, v0"); g("v_lshrrev_b32 v2, 6, v0"); g.nop(); g("v_readfirstlane_b32 s6, v2")
    g("s_waitcnt lgkmcnt(0)")
    srd(g, 8, 0, 2048*896); srd(g, 24, 9, 0x1000000)
    g("s_lshl_b32 s4, s2, 2"); g("s_add_u32 s4, s4, s6")
    g("s_mul_i32 s5, s4, 896"); g("v_lshlrev_b32 v3, 4, v1")
    g("v_cmp_gt_u32 s[32:33], 56, v1")
    g("v_min_u32 v3, 880, v3")
    g("buffer_load_dwordx4 v[4:7], v3, s[8:11], s5 offen")
    g("s_waitcnt vmcnt(0)")
    for q in range(4): g(f"v_cndmask_b32 v{4+q}, 0, v{4+q}, s[32:33]")
    for q in range(4):
        g(f"v_lshlrev_b32 v{8+2*q}, 16, v{4+q}"); g(f"v_and_b32 v{9+2*q}, 0xffff0000, v{4+q}")
    def wavesum(r):
        for m in (1, 2, 4, 8, 16):
            g(f"ds_swizzle_b32 v20, v{r} offset:{(m<<10)|0x1f}"); g("s_waitcnt lgkmcnt(0)"); g(f"v_add_f32 v{r}, v{r}, v20")
        g(f"ds_bpermute_b32 v20, v21, v{r}"); g("s_waitcnt lgkmcnt(0)"); g(f"v_add_f32 v{r}, v{r}, v20")
    g("v_lshlrev_b32 v21, 2, v1"); g("v_xor_b32 v21, 128, v21")
    g("v_pk_add_f32 v[16:17], v[8:9], v[10:11]"); g("v_pk_add_f32 v[18:19], v[12:13], v[14:15]")
    g("v_pk_add_f32 v[16:17], v[16:17], v[18:19]"); g("v_add_f32 v16, v16, v17")
    wavesum(16)
    g("v_mul_f32 v16, 0x3b124925, v16"); g("v_mov_b32 v17, v16")
    for q in range(4): g(f"v_pk_add_f32 v[{24+2*q}:{25+2*q}], v[{8+2*q}:{9+2*q}], v[16:17] neg_lo:[0,1] neg_hi:[0,1]")
    g("v_pk_mul_f32 v[18:19], v[24:25], v[24:25]")
    for q in range(1, 4): g(f"v_pk_fma_f32 v[18:19], v[{24+2*q}:{25+2*q}], v[{24+2*q}:{25+2*q}], v[18:19]")
    g("v_add_f32 v18, v18, v19"); g("v_cndmask_b32 v18, 0, v18, s[32:33]")
    wavesum(18)
    g("v_mul_f32 v18, 0x3b124925, v18")
    rnd2(g, 18, 16, 22)
    g("v_add_f32 v18, 0x3727c5ac, v18"); rnd2(g, 18, 19, 22)
    g("v_sqrt_f32 v18, v18"); g.nop(); rnd2(g, 18, 19, 22)
    g("v_rcp_f32 v18, v18"); g.nop(); g("v_mov_b32 v19, v18"); g("v_mov_b32 v17, v16")
    for q in range(4):
        g(f"v_pk_add_f32 v[{8+2*q}:{9+2*q}], v[{8+2*q}:{9+2*q}], v[16:17] neg_lo:[0,1] neg_hi:[0,1]")
        g(f"v_cvt_pk_bf16_f32 v{4+q}, v{8+2*q}, v{9+2*q}")
        g(f"v_lshlrev_b32 v{8+2*q}, 16, v{4+q}"); g(f"v_and_b32 v{9+2*q}, 0xffff0000, v{4+q}")
        g(f"v_pk_mul_f32 v[{8+2*q}:{9+2*q}], v[{8+2*q}:{9+2*q}], v[18:19]")
        g(f"v_cvt_pk_bf16_f32 v{4+q}, v{8+2*q}, v{9+2*q}")
    g("v_lshrrev_b32 v3, 1, v1"); g("v_lshlrev_b32 v3, 10, v3"); g("v_and_b32 v2, 1, v1"); g("v_lshl_add_u32 v3, v2, 9, v3")
    g("s_lshr_b32 s30, s4, 5"); g("s_mul_i32 s30, s30, 28672"); g("s_and_b32 s31, s4, 31"); g("s_lshl_b32 s31, s31, 4")
    g("s_add_u32 s30, s30, s31"); g(f"s_add_u32 s30, s30, {WS_XN}")
    g("s_and_saveexec_b64 s[34:35], s[32:33]")
    g("buffer_store_dwordx4 v[4:7], v3, s[24:27], s30 offen")
    g.lab("K0_done"); g("s_endpgm")
    return g.o

def k1():
    g = G()
    A = 16; BF = 192; T = 216; PK = 224; VV = 232; KVA = 240
    SLAB = 28672; RED = 2*SLAB
    g("s_cmp_ge_u32 s2, 256"); g("s_cbranch_scc1 K1_done")
    g("s_load_dwordx2 s[12:13], s[0:1], 8")
    g("s_load_dwordx2 s[16:17], s[0:1], 32"); g("s_load_dwordx2 s[20:21], s[0:1], 40")
    g("s_load_dwordx2 s[24:25], s[0:1], 72")
    consts(g)
    g("s_bfe_u32 s4, s2, 0x30004"); g("s_and_b32 s5, s2, 15")
    g("v_and_b32 v1, 63, v0"); g("v_lshrrev_b32 v2, 6, v0")
    g.nop(); g("v_readfirstlane_b32 s6, v2")
    g("s_waitcnt lgkmcnt(0)")
    srd(g, 12, 1, 448*2688); srd(g, 16, 4, 448*3584); srd(g, 20, 5, 448*3584); srd(g, 24, 9, 0x1000000)
    g("s_lshl_b32 s7, s4, 8"); g("s_lshl_b32 s30, s6, 5"); g("s_add_u32 s7, s7, s30")
    g("v_and_b32 v3, 31, v1"); g("v_lshrrev_b32 v4, 5, v1")
    g("v_lshlrev_b32 v5, 4, v1")
    g("v_lshrrev_b32 v6, 5, v1"); g("v_lshlrev_b32 v6, 9, v6")
    g("v_bfe_u32 v7, v1, 2, 2"); g("v_lshl_add_u32 v6, v7, 6, v6")
    g("v_bfe_u32 v7, v1, 4, 1"); g("v_lshl_add_u32 v6, v7, 5, v6")
    g("v_and_b32 v7, 3, v1"); g("v_lshl_add_u32 v6, v7, 3, v6")
    g("v_lshrrev_b32 v7, 4, v1"); g("v_lshlrev_b32 v7, 2, v7"); g("v_bfe_u32 v8, v1, 2, 2"); g("v_add_u32 v7, v7, v8")
    g("s_movk_i32 s30, 3584"); g("v_mul_lo_u32 v7, v7, s30"); g("v_and_b32 v8, 3, v1"); g("v_lshl_add_u32 v7, v8, 4, v7")
    g("v_add_u32 v8, s7, v3")
    g("s_lshr_b32 s30, s7, 5"); g("s_lshl_b32 s31, s30, 15"); g("s_lshl_b32 s33, s5, 11"); g("s_add_u32 s31, s31, s33"); g("v_add_u32 v9, s31, v5")
    g(f"s_mul_i32 s31, s30, {112*1024}"); g(f"s_mul_i32 s33, s5, {7*1024}"); g("s_add_u32 s31, s31, s33"); g(f"s_add_u32 s31, s31, {WS_H}"); g("v_add_u32 v15, s31, v5")
    g("s_mul_i32 s35, s5, 224")
    g("s_cmp_ge_u32 s2, 128"); g("s_cbranch_scc1 K1_typeB")
    accs = {0:128, 1:160, 2:128, 3:160, 4:176, 5:128, 6:144, 7:160, 8:176, 9:128, 10:144}
    def path(units):
        state = {"out": []}
        def load_a():
            g("s_lshr_b32 s30, s7, 5"); g("s_mul_i32 s30, s30, 28672"); g(f"s_add_u32 s30, s30, {WS_XN}")
            for k4 in range(7):
                for q in range(4):
                    ks = 4*k4+q
                    g(f"buffer_load_dwordx4 v[{A+4*ks}:{A+4*ks+3}], v5, s[24:27], s30 offen offset:{q*1024}")
                    state["out"].append(("a", ks, 1))
                g("s_add_u32 s30, s30, 4096")
        pos = {u: i for i, u in enumerate(units)}
        def issue_slab(u):
            p, wh = (u-3)//2, (u-3)&1
            sr = 16 if wh == 0 else 20
            for q in range(4):
                if q < 3: g(f"s_add_u32 s38, s6, {8*q}")
                else: g("s_and_b32 s38, s6, 3"); g("s_add_u32 s38, s38, 24")
                g(f"s_lshl_b32 s30, s38, 10"); g(f"s_add_u32 s30, s30, {(pos[u]%2)*SLAB}"); g("s_mov_b32 m0, s30")
                g(f"s_mul_i32 s30, s38, {16*3584}"); g(f"s_add_u32 s30, s30, {p*64}"); g("s_add_u32 s30, s30, s35")
                g(f"buffer_load_dwordx4 v7, s[{sr}:{sr+3}], s30 offen lds")
            state["out"].append(("slab", u, 4))
        def wait_for(kind, u):
            n = 0; found = False
            for it in state["out"]:
                if found: n += it[2]
                if it[0] == kind and it[1] == u: found = True
            if found: g(f"s_waitcnt vmcnt({n})")
        stv = list(range(144, 160)) + list(range(176, 188))
        def stregs(u):
            return [(128+14*u+2*it) for it in range(7)] if u < 2 else [stv[2*it] for it in range(7)]
        def stage_load(u):
            g(f"s_add_u32 s30, s31, {u*896}")
            for it, rr in enumerate(stregs(u)):
                g(f"s_add_u32 s34, s30, {it*64*2688}")
                g(f"buffer_load_dwordx2 v[{rr}:{rr+1}], v8, s[12:15], s34 offen")
            state["out"].append(("stg", u, 7))
        def stage_write(u):
            wait_for("stg", u)
            g(f"v_add_u32 v11, {(u%2)*SLAB}, v10")
            for it, rr in enumerate(stregs(u)):
                g(f"v_cndmask_b32 v{rr}, v{rr}, 0, s[32:33]"); g(f"v_cndmask_b32 v{rr+1}, v{rr+1}, 0, s[32:33]")
                g(f"ds_write_b64 v11, v[{rr}:{rr+1}] offset:{it*4096}")
        if 0 in pos:
            g("v_lshrrev_b32 v12, 3, v0"); g("v_and_b32 v13, 7, v0")
            g("s_movk_i32 s30, 2688"); g("v_mul_lo_u32 v8, v12, s30"); g("v_lshl_add_u32 v8, v13, 3, v8")
            g("s_mul_i32 s31, s5, 56")
            g("v_lshrrev_b32 v10, 2, v12"); g("v_lshlrev_b32 v10, 8, v10"); g("v_and_b32 v11, 3, v12")
            g("v_lshl_add_u32 v10, v11, 6, v10"); g("v_lshl_add_u32 v10, v13, 3, v10")
            g("v_cmp_eq_u32 s[32:33], 7, v13")
            stage_load(0); stage_load(1); load_a(); stage_write(0); stage_write(1)
        else:
            issue_slab(units[0]); load_a()
        def epilogue(u):
            e = G()
            if u == 0:
                phi_pack(e, accs[0], PK, T)
                e(f"buffer_store_dwordx4 v[{PK}:{PK+3}], v9, s[24:27], 0 offen")
                e(f"buffer_store_dwordx4 v[{PK+4}:{PK+7}], v9, s[24:27], 0 offen offset:1024"); e.nop(1)
            elif u == 1:
                phi_pack(e, accs[1], PK, T)
                e("v_cmp_gt_u32 vcc, 28, v3"); e.nop(1)
                for i in range(8): e(f"v_cndmask_b32 v{PK+i}, 0, v{PK+i}, vcc")
            elif u == 2:
                ac = accs[2]
                for i in range(8): e(f"v_cvt_pk_bf16_f32 v{VV+i}, v{ac+2*i}, v{ac+2*i+1}")
                e("v_cmp_eq_u32 vcc, 28, v3"); e(f"v_mov_b32 v{T}, 0x3f803f80"); e.nop(1)
                for i in range(8): e(f"v_cndmask_b32 v{VV+i}, v{VV+i}, v{T}, vcc")
                for i in range(16): e(f"v_mov_b32 v{KVA+i}, 0")
                e.nop(1)
                e(f"v_mfma_f32_32x32x16_bf16 v[{KVA}:{KVA+15}], v[{PK}:{PK+3}], v[{VV}:{VV+3}], v[{KVA}:{KVA+15}]")
                e(f"v_mfma_f32_32x32x16_bf16 v[{KVA}:{KVA+15}], v[{PK+4}:{PK+7}], v[{VV+4}:{VV+7}], v[{KVA}:{KVA+15}]")
                e.nop(15); e.nop(3)
                e("v_lshlrev_b32 v10, 4, v1"); e("s_lshl_b32 s36, s6, 12"); e(f"s_add_u32 s36, s36, {RED}"); e("v_add_u32 v10, s36, v10")
                for q in range(4): e(f"ds_write_b128 v10, v[{KVA+4*q}:{KVA+4*q+3}] offset:{q*1024}")
                e("s_waitcnt lgkmcnt(0)"); e("s_barrier")
                e("v_lshlrev_b32 v10, 4, v1"); e("s_lshr_b32 s36, s6, 1"); e("s_lshl_b32 s36, s36, 10"); e("s_and_b32 s37, s6, 1"); e("s_lshl_b32 s37, s37, 3")
                e("s_add_u32 s36, s36, s37"); e(f"s_add_u32 s36, s36, {RED}"); e("v_add_u32 v10, s36, v10")
                for w in range(8): e(f"ds_read_b64 v[{KVA+2*w}:{KVA+2*w+1}], v10 offset:{w*4096}")
                e("s_waitcnt lgkmcnt(0)")
                for w in range(1, 8):
                    for i in range(2): e(f"v_add_f32 v{KVA+i}, v{KVA+i}, v{KVA+2*w+i}")
                e("v_lshlrev_b32 v10, 6, v1"); e("s_lshl_b32 s36, s4, 16"); e("s_lshl_b32 s37, s5, 12"); e("s_add_u32 s36, s36, s37")
                e("s_lshl_b32 s37, s6, 3"); e("s_add_u32 s36, s36, s37"); e(f"s_add_u32 s36, s36, {WS_KVP}")
                e(f"buffer_store_dwordx2 v[{KVA}:{KVA+1}], v10, s[24:27], s36 offen"); e.nop(1)
            else:
                p = (u-3)//2; G0, G1 = accs[u-1], accs[u]
                for i in range(0, 16, 2):
                    a, b = G0+i, G0+i+1; c, d = G1+i, G1+i+1
                    rnd2(e, a, b, T); rnd2(e, c, d, T); silu_rnd(e, a, b, T)
                    e(f"v_mul_f32 v{a}, v{a}, v{c}"); e(f"v_mul_f32 v{b}, v{b}, v{d}")
                    e(f"v_cvt_pk_bf16_f32 v{PK+i//2}, v{a}, v{b}")
                e(f"s_movk_i32 s39, {p*2048}"); e(f"buffer_store_dwordx4 v[{PK}:{PK+3}], v15, s[24:27], s39 offen")
                if p < 3: e(f"buffer_store_dwordx4 v[{PK+4}:{PK+7}], v15, s[24:27], s39 offen offset:1024")
                e.nop(1)
            return e.o
        D = 4; NB = 6
        pend = []
        for idx, u in enumerate(units):
            if u >= 3: wait_for("slab", u)
            g("s_waitcnt lgkmcnt(0)"); g("s_barrier")
            nxt = units[idx+1] if idx+1 < len(units) else None
            if nxt is not None:
                if nxt >= 3: issue_slab(nxt)
                elif nxt == 2: stage_write(2)
            if u == 0: stage_load(2)
            acc = accs[u]
            for i in range(16): g(f"v_mov_b32 v{acc+i}, 0")
            g(f"v_add_u32 v2, {(idx%2)*SLAB}, v6")
            def rd(ks):
                b = BF + 4*(ks % NB)
                g(f"ds_read_b64_tr_b16 v[{b}:{b+1}], v2 offset:{ks*1024}")
                g(f"ds_read_b64_tr_b16 v[{b+2}:{b+3}], v2 offset:{ks*1024+256}")
            for ks in range(D): rd(ks)
            nslots = 27 if u < 3 or (u-3)&1 else 55
            per = -(-len(pend) // nslots) if pend else 0
            def emit(ls):
                for l in ls:
                    g.o.append(l)
                    if "buffer_store" in l: state["out"].append(("st", u, 1))
            for ks in range(28):
                if ks + D < 28: rd(ks+D)
                if idx == 0: wait_for("a", ks)
                g(f"s_waitcnt lgkmcnt({2*min(D, 27-ks)})")
                b = BF + 4*(ks % NB); a = A + 4*ks
                if u == 0 or u >= 3:
                    g(f"v_mfma_f32_32x32x16_bf16 v[{acc}:{acc+15}], v[{b}:{b+3}], v[{a}:{a+3}], v[{acc}:{acc+15}]")
                else:
                    g(f"v_mfma_f32_32x32x16_bf16 v[{acc}:{acc+15}], v[{a}:{a+3}], v[{b}:{b+3}], v[{acc}:{acc+15}]")
                if ks >= 1:
                    chunk, pend = pend[:per], pend[per:]; emit(chunk)
            if u < 3 or (u-3)&1:
                emit(pend); pend = epilogue(u)
        g.nop(15); g.nop(3)
        g.o += pend
    path([0, 1, 2, 3, 4]); g("s_branch K1_done")
    g.lab("K1_typeB"); path([5, 6, 7, 8, 9, 10])
    g.lab("K1_done"); g("s_endpgm")
    return g.o

def k2():
    g = G()
    ACC = 64; HF = 128; BF = 192; T = 224
    g("s_cmp_ge_u32 s2, 240"); g("s_cbranch_scc1 K2_done")
    g("s_load_dwordx2 s[8:9], s[0:1], 48"); g("s_load_dwordx2 s[24:25], s[0:1], 72")
    consts(g)
    g("v_and_b32 v1, 63, v0"); g("v_lshrrev_b32 v2, 6, v0"); g.nop(); g("v_readfirstlane_b32 s6, v2")
    g("s_waitcnt lgkmcnt(0)")
    srd(g, 8, 6, 1792*896); srd(g, 24, 9, 0x1000000)
    g("s_cmp_lt_u32 s2, 224"); g("s_cbranch_scc1 K2_gemm")
    g("s_cmp_lg_u32 s6, 0"); g("s_cbranch_scc1 K2_done")
    g("s_sub_u32 s4, s2, 224"); g("v_lshlrev_b32 v3, 6, v1")
    for i in range(16): g(f"v_mov_b32 v{16+i}, 0")
    for rb in range(8):
        g("s_lshl_b32 s30, s4, 12"); g(f"s_add_u32 s30, s30, {WS_KVP + rb*65536}")
        for q in range(4): g(f"buffer_load_dwordx4 v[{64+16*rb+4*q}:{67+16*rb+4*q}], v3, s[24:27], s30 offen offset:{q*16}")
    g("s_waitcnt vmcnt(0)")
    for rb in range(8):
        for i in range(16): g(f"v_add_f32 v{16+i}, v{16+i}, v{64+16*rb+i}")
    for i in range(8): g(f"v_cvt_pk_bf16_f32 v{48+i}, v{16+2*i}, v{17+2*i}")
    g("v_lshlrev_b32 v3, 5, v1"); g("s_lshl_b32 s30, s4, 11"); g(f"s_add_u32 s30, s30, {WS_KV}")
    g("buffer_store_dwordx4 v[48:51], v3, s[24:27], s30 offen"); g("buffer_store_dwordx4 v[52:55], v3, s[24:27], s30 offen offset:16")
    g("s_branch K2_done")
    g.lab("K2_gemm")
    g("s_and_b32 s4, s2, 31"); g("s_lshr_b32 s5, s2, 5")
    g("v_and_b32 v3, 31, v1"); g("v_lshrrev_b32 v4, 5, v1")
    g("s_lshl_b32 s7, s4, 6"); g("v_lshlrev_b32 v5, 4, v1"); g(f"s_mul_i32 s30, s4, {2*112*1024}")
    g(f"s_mul_i32 s33, s6, {14*1024}"); g("s_add_u32 s30, s30, s33"); g(f"s_add_u32 s30, s30, {WS_H}"); g("v_add_u32 v5, s30, v5")
    g(f"v_add_u32 v8, {112*1024}, v5")
    g("v_lshrrev_b32 v6, 5, v1"); g("v_lshlrev_b32 v6, 9, v6")
    g("v_bfe_u32 v7, v1, 2, 2"); g("v_lshl_add_u32 v6, v7, 6, v6")
    g("v_bfe_u32 v7, v1, 4, 1"); g("v_lshl_add_u32 v6, v7, 5, v6")
    g("v_and_b32 v7, 3, v1"); g("v_lshl_add_u32 v6, v7, 3, v6"); g("s_lshl_b32 s31, s6, 14"); g("v_add_u32 v6, s31, v6")
    g("v_bfe_u32 v7, v1, 4, 1"); g("v_lshlrev_b32 v7, 3, v7"); g("v_lshrrev_b32 v9, 5, v1"); g("v_lshl_add_u32 v7, v9, 2, v7")
    g("v_bfe_u32 v9, v1, 2, 2"); g("v_add_u32 v7, v7, v9"); g("s_movk_i32 s30, 896"); g("v_mul_lo_u32 v7, v7, s30")
    g("v_and_b32 v9, 3, v1"); g("v_lshl_add_u32 v7, v9, 4, v7")
    g("s_mul_i32 s32, s6, {}".format(14*16*896)); g("s_lshl_b32 s30, s5, 7"); g("s_add_u32 s32, s32, s30")
    for i in range(64): g(f"v_mov_b32 v{ACC+i}, 0")
    P = 7
    def issue(ks):
        for un in range(2):
            g(f"s_add_u32 s30, s31, {(ks%8)*2048 + un*1024}"); g("s_mov_b32 m0, s30")
            g(f"s_add_u32 s30, s32, {ks*16*896 + un*64}")
            g(f"buffer_load_dwordx4 v7, s[8:11], s30 offen lds")
        h = HF + 8*(ks % 8)
        g(f"s_movk_i32 s30, {ks*1024}")
        g(f"buffer_load_dwordx4 v[{h}:{h+3}], v5, s[24:27], s30 offen")
        g(f"buffer_load_dwordx4 v[{h+4}:{h+7}], v8, s[24:27], s30 offen")
    for ks in range(P): issue(ks)
    for ks in range(14):
        if ks + P < 14: issue(ks+P)
        g(f"s_waitcnt vmcnt({4*min(P, 13-ks)})")
        o = (ks%8)*2048
        for un in range(2):
            g(f"ds_read_b64_tr_b16 v[{BF+4*un}:{BF+4*un+1}], v6 offset:{o+un*1024}")
            g(f"ds_read_b64_tr_b16 v[{BF+4*un+2}:{BF+4*un+3}], v6 offset:{o+un*1024+256}")
        g("s_waitcnt lgkmcnt(0)")
        h = HF + 8*(ks % 8)
        for un in range(2):
            for t in range(2):
                a = ACC + 16*(2*un+t)
                g(f"v_mfma_f32_32x32x16_bf16 v[{a}:{a+15}], v[{BF+4*un}:{BF+4*un+3}], v[{h+4*t}:{h+4*t+3}], v[{a}:{a+15}]")
    g.nop(15); g.nop(3)
    g("s_barrier")
    g("v_lshlrev_b32 v10, 4, v1"); g("s_lshl_b32 s30, s6, 14"); g("v_add_u32 v10, s30, v10")
    for q in range(16): g(f"ds_write_b128 v10, v[{ACC+4*q}:{ACC+4*q+3}] offset:{q*1024}")
    g("s_waitcnt lgkmcnt(0)"); g("s_barrier")
    g("v_lshlrev_b32 v10, 4, v1"); g("s_lshr_b32 s30, s6, 1"); g("s_lshl_b32 s30, s30, 12"); g("s_and_b32 s33, s6, 1"); g("s_lshl_b32 s33, s33, 11")
    g("s_add_u32 s30, s30, s33"); g("v_add_u32 v10, s30, v10"); g("v_add_u32 v11, 0x10000, v10")
    for w in range(8):
        for q in range(2): g(f"ds_read_b128 v[{ACC+8*w+4*q}:{ACC+8*w+4*q+3}], v{10 if w < 4 else 11} offset:{(w%4)*16384+q*1024}")
    g("s_waitcnt lgkmcnt(0)")
    for w in range(1, 8):
        for i in range(8): g(f"v_add_f32 v{ACC+i}, v{ACC+i}, v{ACC+8*w+i}")
    for i in range(0, 8, 2):
        rnd2(g, ACC+i, ACC+i+1, T); silu_rnd(g, ACC+i, ACC+i+1, T)
        g(f"v_cvt_pk_bf16_f32 v{BF+i//2}, v{ACC+i}, v{ACC+i+1}")
    g("s_bfe_u32 s30, s6, 0x10001"); g("s_lshl_b32 s33, s4, 1"); g("s_add_u32 s30, s30, s33"); g(f"s_mul_i32 s30, s30, {28*1024}")
    g("v_lshlrev_b32 v10, 4, v1")
    g("s_lshr_b32 s33, s6, 2"); g("s_lshl_b32 s33, s33, 11"); g("s_add_u32 s30, s30, s33"); g("s_lshl_b32 s33, s5, 12"); g("s_add_u32 s30, s30, s33"); g(f"s_add_u32 s30, s30, {WS_G}")
    g("s_and_b32 s33, s6, 1"); g("s_lshl_b32 s33, s33, 10"); g("s_add_u32 s30, s30, s33")
    g(f"buffer_store_dwordx4 v[{BF}:{BF+3}], v10, s[24:27], s30 offen")
    g.lab("K2_done"); g("s_endpgm")
    return g.o

def k3():
    g = G()
    ACC = 64; PQF = 96; KVF = 112; BF = 128; OF = 144; T = 160; GX = 176
    g("s_cmp_ge_u32 s2, 128"); g("s_cbranch_scc1 K3_done")
    g("s_load_dwordx2 s[8:9], s[0:1], 16"); g("s_load_dwordx2 s[12:13], s[0:1], 0"); g("s_load_dwordx2 s[16:17], s[0:1], 56")
    g("s_load_dwordx2 s[24:25], s[0:1], 72")
    consts(g)
    g("v_and_b32 v1, 63, v0"); g("v_lshrrev_b32 v2, 6, v0"); g.nop(); g("v_readfirstlane_b32 s6, v2")
    g("s_waitcnt lgkmcnt(0)")
    srd(g, 8, 2, 448*896); srd(g, 12, 0, 2048*896); srd(g, 16, 7, 2048*896); srd(g, 24, 9, 0x1000000)
    g("s_and_b32 s4, s2, 63"); g("s_lshr_b32 s5, s2, 6"); g("s_lshl_b32 s7, s4, 5")
    g("v_and_b32 v3, 31, v1"); g("v_lshrrev_b32 v4, 5, v1")
    g("v_lshlrev_b32 v5, 4, v1"); g("s_lshl_b32 s30, s4, 15"); g("v_add_u32 v5, s30, v5")
    g("v_lshlrev_b32 v8, 5, v1")
    g("v_add_u32 v14, 32, v3"); g("v_lshlrev_b32 v14, 2, v14")
    g("v_lshlrev_b32 v10, 4, v1"); g(f"v_add_u32 v10, {8*16384}, v10")
    for hh in range(2):
        g("s_lshl_b32 s30, s6, 12"); g(f"s_add_u32 s30, s30, {hh*2048}")
        g(f"buffer_load_dwordx4 v[{PQF+8*hh}:{PQF+8*hh+3}], v5, s[24:27], s30 offen"); g(f"buffer_load_dwordx4 v[{PQF+8*hh+4}:{PQF+8*hh+7}], v5, s[24:27], s30 offen offset:1024")
        g("s_lshl_b32 s30, s6, 12"); g(f"s_add_u32 s30, s30, {WS_KV + hh*2048}")
        g(f"buffer_load_dwordx4 v[{KVF+8*hh}:{KVF+8*hh+3}], v8, s[24:27], s30 offen"); g(f"buffer_load_dwordx4 v[{KVF+8*hh+4}:{KVF+8*hh+7}], v8, s[24:27], s30 offen offset:16")
    g("v_lshrrev_b32 v6, 5, v1"); g("v_lshlrev_b32 v6, 9, v6")
    g("v_bfe_u32 v7, v1, 2, 2"); g("v_lshl_add_u32 v6, v7, 6, v6")
    g("v_bfe_u32 v7, v1, 4, 1"); g("v_lshl_add_u32 v6, v7, 5, v6")
    g("v_and_b32 v7, 3, v1"); g("v_lshl_add_u32 v6, v7, 3, v6"); g("s_lshl_b32 s31, s6, 14"); g("v_add_u32 v6, s31, v6")
    g("v_bfe_u32 v7, v1, 4, 1"); g("v_lshlrev_b32 v7, 3, v7"); g("v_lshrrev_b32 v9, 5, v1"); g("v_lshl_add_u32 v7, v9, 2, v7")
    g("v_bfe_u32 v9, v1, 2, 2"); g("v_add_u32 v7, v7, v9")
    g("v_add_u32 v12, 16, v7"); g("v_min_u32 v12, 27, v12")
    g("s_movk_i32 s30, 896"); g("v_mul_lo_u32 v7, v7, s30"); g("v_mul_lo_u32 v12, v12, s30")
    g("v_and_b32 v9, 3, v1"); g("v_lshl_add_u32 v7, v9, 4, v7"); g("v_lshl_add_u32 v12, v9, 4, v12")
    g("v_add_u32 v13, s7, v3"); g("s_movk_i32 s30, 896"); g("v_mul_lo_u32 v13, v13, s30")
    g("s_min_u32 s34, s6, 6")
    g("s_mul_i32 s33, s5, 7"); g("s_add_u32 s33, s33, s34"); g("s_lshl_b32 s32, s33, 6")
    g(f"s_mul_i32 s30, s4, {28*1024}"); g("s_lshl_b32 s35, s33, 11"); g("s_add_u32 s30, s30, s35"); g(f"s_add_u32 s30, s30, {WS_G}"); g("v_lshlrev_b32 v11, 4, v1")
    g(f"buffer_load_dwordx4 v[{GX}:{GX+3}], v11, s[24:27], s30 offen"); g(f"buffer_load_dwordx4 v[{GX+4}:{GX+7}], v11, s[24:27], s30 offen offset:1024")
    g("v_lshl_add_u32 v11, v4, 3, v13")
    for q in range(4): g(f"buffer_load_dwordx2 v[{GX+8+2*q}:{GX+9+2*q}], v11, s[12:15], s32 offen offset:{q*16}")
    P = 15
    def issue(ks):
        g(f"s_add_u32 s30, s31, {(ks%16)*1024}"); g("s_mov_b32 m0, s30")
        g(f"s_add_u32 s30, s32, {(ks//2)*28*896}")
        g(f"buffer_load_dwordx4 v{7 if ks%2==0 else 12}, s[8:11], s30 offen lds")
    for ks in range(P): issue(ks)
    g(f"s_waitcnt vmcnt({6+P})")
    for hh in range(2):
        a = ACC + 16*hh
        for i in range(16): g(f"v_mov_b32 v{a+i}, 0")
        g.nop(1)
        g(f"v_mfma_f32_32x32x16_bf16 v[{a}:{a+15}], v[{KVF+8*hh}:{KVF+8*hh+3}], v[{PQF+8*hh}:{PQF+8*hh+3}], v[{a}:{a+15}]")
        g(f"v_mfma_f32_32x32x16_bf16 v[{a}:{a+15}], v[{KVF+8*hh+4}:{KVF+8*hh+7}], v[{PQF+8*hh+4}:{PQF+8*hh+7}], v[{a}:{a+15}]")
    g.nop(15); g.nop(3)
    for hh in range(2):
        a = ACC + 16*hh
        g(f"ds_bpermute_b32 v{T}, v14, v{a+12}"); g("s_waitcnt lgkmcnt(0)")
        rnd2(g, T, T+1, T+2); g(f"v_add_f32 v{T}, s91, v{T}"); rnd2(g, T, T+1, T+2)
        g(f"v_rcp_f32 v{T}, v{T}"); g.nop()
        for i in range(0, 16, 2):
            rnd2(g, a+i, a+i+1, T+2)
            g(f"v_mul_f32 v{a+i}, v{a+i}, v{T}"); g(f"v_mul_f32 v{a+i+1}, v{a+i+1}, v{T}")
            g(f"v_cvt_pk_bf16_f32 v{OF+i//2}, v{a+i}, v{a+i+1}")
        g("v_cmp_eq_u32 vcc, 0, v4"); g.nop(1)
        g(f"v_cndmask_b32 v{OF+6}, 0, v{OF+6}, vcc"); g(f"v_cndmask_b32 v{OF+7}, 0, v{OF+7}, vcc")
        g("s_lshl_b32 s30, s6, 12"); g(f"v_add_u32 v15, s30, v10")
        g(f"ds_write_b128 v15, v[{OF}:{OF+3}] offset:{hh*2048}"); g(f"ds_write_b128 v15, v[{OF+4}:{OF+7}] offset:{hh*2048+1024}")
    g("s_waitcnt lgkmcnt(0)"); g("s_barrier")
    g("s_cmp_eq_u32 s6, 7"); g("s_cbranch_scc1 K3_done")
    for i in range(16): g(f"v_mov_b32 v{ACC+i}, 0")
    for ks in range(32):
        if ks + P < 32: issue(ks+P)
        g(f"s_waitcnt vmcnt({min(P, 31-ks)})")
        o = (ks%16)*1024; b = BF + 8*(ks%2)
        g(f"ds_read_b64_tr_b16 v[{b}:{b+1}], v6 offset:{o}"); g(f"ds_read_b64_tr_b16 v[{b+2}:{b+3}], v6 offset:{o+256}")
        g(f"ds_read_b128 v[{b+4}:{b+7}], v10 offset:{ks*1024}")
        g("s_waitcnt lgkmcnt(0)")
        g(f"v_mfma_f32_32x32x16_bf16 v[{ACC}:{ACC+15}], v[{b}:{b+3}], v[{b+4}:{b+7}], v[{ACC}:{ACC+15}]")
    g.nop(15); g.nop(3)
    for i in range(0, 16, 2):
        a, b = ACC+i, ACC+i+1
        rnd2(g, a, b, T)
        g(f"v_lshlrev_b32 v{T}, 16, v{GX+i//2}"); g(f"v_and_b32 v{T+1}, 0xffff0000, v{GX+i//2}")
        g(f"v_mul_f32 v{a}, v{a}, v{T}"); g(f"v_mul_f32 v{b}, v{b}, v{T+1}")
        rnd2(g, a, b, T)
        g(f"v_lshlrev_b32 v{T}, 16, v{GX+8+i//2}"); g(f"v_and_b32 v{T+1}, 0xffff0000, v{GX+8+i//2}")
        g(f"v_add_f32 v{a}, v{a}, v{T}"); g(f"v_add_f32 v{b}, v{b}, v{T+1}")
        g(f"v_cvt_pk_bf16_f32 v{GX+8+i//2}, v{a}, v{b}")
    for q in range(4): g(f"buffer_store_dwordx2 v[{GX+8+2*q}:{GX+9+2*q}], v11, s[16:19], s32 offen offset:{q*16}")
    g.lab("K3_done"); g("s_endpgm")
    return g.o

hdr = open(f"cdna_kernels/{NAME}.s.ref").read().split("; Override")[0]
out = hdr
out += "; @launch kernel=k0_kernel grid=(512,1,1) block=(256,1,1) lds=0\n"
out += "; @launch kernel=k1_kernel grid=(256,1,1) block=(512,1,1) lds=90112\n"
out += "; @launch kernel=k2_kernel grid=(240,1,1) block=(512,1,1) lds=131072\n"
out += "; @launch kernel=k3_kernel grid=(128,1,1) block=(512,1,1) lds=163840\n"
out += '.amdgcn_target "amdgcn-amd-amdhsa--gfx950"\n.text\n'
for nm, f in (("k0_kernel", k0), ("k1_kernel", k1), ("k2_kernel", k2), ("k3_kernel", k3)):
    out += f".globl {nm}\n.p2align 8\n.type {nm},@function\n{nm}:\n" + "\n".join(f()) + "\n"
out += kdesc("k0_kernel", 32) + kdesc("k1_kernel", 256) + kdesc("k2_kernel", 256) + kdesc("k3_kernel", 256)
open(f"cdna_kernels/{NAME}.s", "w").write(out)
```

```python
import sys
NAME = "recurrent_scan__linear_attn_block__glu_gated_swiglu__prompt"
WS_PQ = 0x000000; WS_H = 0x200000; WS_KVP = 0xA00000; WS_KV = 0xB00000; WS_G = 0xC00000
L2E = 0x3fb8aa3b
EPS6 = 0x358637bd

class G:
    def __init__(s): s.o = []
    def __call__(s, t): s.o.append("    " + t)
    def lab(s, t): s.o.append(t + ":")
    def nop(s, n=0): s(f"s_nop {n}")

def srd(g, d, slot, nbytes, base_add=0):
    if base_add:
        g(f"s_add_u32 s{d}, s{d}, {base_add}"); g(f"s_addc_u32 s{d+1}, s{d+1}, 0")
    g(f"s_and_b32 s{d+1}, s{d+1}, 0xffff")
    g(f"s_mov_b32 s{d+2}, {nbytes}"); g(f"s_mov_b32 s{d+3}, 0x20000")

def rnd2(g, a, b, t):
    g(f"v_cvt_pk_bf16_f32 v{t}, v{a}, v{b}")
    g(f"v_lshlrev_b32 v{a}, 16, v{t}")
    g(f"v_and_b32 v{b}, 0xffff0000, v{t}")

def phi_pack(g, acc, out, t):
    for i in range(0, 16, 2):
        a, b = acc+i, acc+i+1
        rnd2(g, a, b, t)
        g(f"v_mul_f32 v{t}, s90, v{a}"); g(f"v_mul_f32 v{t+1}, s90, v{b}")
        g(f"v_exp_f32 v{t}, v{t}"); g(f"v_exp_f32 v{t+1}, v{t+1}")
        g(f"v_add_f32 v{t+2}, 1.0, v{a}"); g(f"v_add_f32 v{t+3}, 1.0, v{b}")
        g(f"v_cmp_lt_f32 vcc, 0, v{a}"); g.nop(1)
        g(f"v_cndmask_b32 v{a}, v{t}, v{t+2}, vcc")
        g(f"v_cmp_lt_f32 vcc, 0, v{b}"); g.nop(1)
        g(f"v_cndmask_b32 v{b}, v{t+1}, v{t+3}, vcc")
        rnd2(g, a, b, t)
        g(f"v_add_f32 v{a}, s91, v{a}"); g(f"v_add_f32 v{b}, s91, v{b}")
        g(f"v_cvt_pk_bf16_f32 v{out+i//2}, v{a}, v{b}")

def silu_rnd(g, a, b, t):
    for r, tt in ((a, t), (b, t+1)):
        g(f"v_mul_f32 v{tt}, s92, v{r}")
        g(f"v_exp_f32 v{tt}, v{tt}"); g.nop()
        g(f"v_add_f32 v{tt}, 1.0, v{tt}")
        g(f"v_rcp_f32 v{tt}, v{tt}"); g.nop()
        g(f"v_mul_f32 v{r}, v{r}, v{tt}")
    rnd2(g, a, b, t)

def consts(g):
    g(f"s_mov_b32 s90, {L2E}"); g(f"s_mov_b32 s91, {EPS6}"); g(f"s_mov_b32 s92, {L2E | 0x80000000}")

def kdesc(name, vg, sg=100):
    return f""".section .rodata,"a"
.p2align 6
.amdhsa_kernel {name}
  .amdhsa_next_free_vgpr {vg}
  .amdhsa_next_free_sgpr {sg}
  .amdhsa_accum_offset {vg}
  .amdhsa_group_segment_fixed_size 0
  .amdhsa_kernarg_size 80
  .amdhsa_user_sgpr_count 2
  .amdhsa_user_sgpr_kernarg_segment_ptr 1
  .amdhsa_system_sgpr_workgroup_id_x 1
.end_amdhsa_kernel
"""

WS_XN = 0xE00000
WS_W13 = 0x1000000; WS_WQ = 0x1400000; WS_W2 = 0x1600000; WS_WO = 0x1800000
def k0():
    g = G()
    g("s_cmp_ge_u32 s2, 2248"); g("s_cbranch_scc1 K0_done")
    g("s_cmp_ge_u32 s2, 512"); g("s_cbranch_scc1 K0_rep")
    g("s_load_dwordx2 s[8:9], s[0:1], 0"); g("s_load_dwordx2 s[24:25], s[0:1], 72")
    g("v_and_b32 v1, 63, v0"); g("v_lshrrev_b32 v2, 6, v0"); g.nop(); g("v_readfirstlane_b32 s6, v2")
    g("s_waitcnt lgkmcnt(0)")
    srd(g, 8, 0, 2048*896); srd(g, 24, 9, 0x4000000)
    g("s_lshl_b32 s4, s2, 2"); g("s_add_u32 s4, s4, s6")
    g("s_mul_i32 s5, s4, 896"); g("v_lshlrev_b32 v3, 4, v1")
    g("v_cmp_gt_u32 s[32:33], 56, v1")
    g("v_min_u32 v3, 880, v3")
    g("buffer_load_dwordx4 v[4:7], v3, s[8:11], s5 offen")
    g("s_waitcnt vmcnt(0)")
    for q in range(4): g(f"v_cndmask_b32 v{4+q}, 0, v{4+q}, s[32:33]")
    for q in range(4):
        g(f"v_lshlrev_b32 v{8+2*q}, 16, v{4+q}"); g(f"v_and_b32 v{9+2*q}, 0xffff0000, v{4+q}")
    def wavesum(r):
        for m in (1, 2, 4, 8, 16):
            g(f"ds_swizzle_b32 v20, v{r} offset:{(m<<10)|0x1f}"); g("s_waitcnt lgkmcnt(0)"); g(f"v_add_f32 v{r}, v{r}, v20")
        g(f"ds_bpermute_b32 v20, v21, v{r}"); g("s_waitcnt lgkmcnt(0)"); g(f"v_add_f32 v{r}, v{r}, v20")
    g("v_lshlrev_b32 v21, 2, v1"); g("v_xor_b32 v21, 128, v21")
    g("v_pk_add_f32 v[16:17], v[8:9], v[10:11]"); g("v_pk_add_f32 v[18:19], v[12:13], v[14:15]")
    g("v_pk_add_f32 v[16:17], v[16:17], v[18:19]"); g("v_add_f32 v16, v16, v17")
    wavesum(16)
    g("v_mul_f32 v16, 0x3b124925, v16"); g("v_mov_b32 v17, v16")
    for q in range(4): g(f"v_pk_add_f32 v[{24+2*q}:{25+2*q}], v[{8+2*q}:{9+2*q}], v[16:17] neg_lo:[0,1] neg_hi:[0,1]")
    g("v_pk_mul_f32 v[18:19], v[24:25], v[24:25]")
    for q in range(1, 4): g(f"v_pk_fma_f32 v[18:19], v[{24+2*q}:{25+2*q}], v[{24+2*q}:{25+2*q}], v[18:19]")
    g("v_add_f32 v18, v18, v19"); g("v_cndmask_b32 v18, 0, v18, s[32:33]")
    wavesum(18)
    g("v_mul_f32 v18, 0x3b124925, v18")
    rnd2(g, 18, 16, 22)
    g("v_add_f32 v18, 0x3727c5ac, v18"); rnd2(g, 18, 19, 22)
    g("v_sqrt_f32 v18, v18"); g.nop(); rnd2(g, 18, 19, 22)
    g("v_rcp_f32 v18, v18"); g.nop(); g("v_mov_b32 v19, v18"); g("v_mov_b32 v17, v16")
    for q in range(4):
        g(f"v_pk_add_f32 v[{8+2*q}:{9+2*q}], v[{8+2*q}:{9+2*q}], v[16:17] neg_lo:[0,1] neg_hi:[0,1]")
        g(f"v_cvt_pk_bf16_f32 v{4+q}, v{8+2*q}, v{9+2*q}")
        g(f"v_lshlrev_b32 v{8+2*q}, 16, v{4+q}"); g(f"v_and_b32 v{9+2*q}, 0xffff0000, v{4+q}")
        g(f"v_pk_mul_f32 v[{8+2*q}:{9+2*q}], v[{8+2*q}:{9+2*q}], v[18:19]")
        g(f"v_cvt_pk_bf16_f32 v{4+q}, v{8+2*q}, v{9+2*q}")
    g("v_lshrrev_b32 v3, 1, v1"); g("v_lshlrev_b32 v3, 10, v3"); g("v_and_b32 v2, 1, v1"); g("v_lshl_add_u32 v3, v2, 9, v3")
    g("s_lshr_b32 s30, s4, 5"); g("s_mul_i32 s30, s30, 28672"); g("s_and_b32 s31, s4, 31"); g("s_lshl_b32 s31, s31, 4")
    g("s_add_u32 s30, s30, s31"); g(f"s_add_u32 s30, s30, {WS_XN}")
    g("s_and_saveexec_b64 s[34:35], s[32:33]")
    g("buffer_store_dwordx4 v[4:7], v3, s[24:27], s30 offen")
    g("s_branch K0_done")
    g.lab("K0_rep")
    g("s_load_dwordx2 s[24:25], s[0:1], 72")
    g("v_bfe_u32 v2, v0, 2, 2"); g("v_and_b32 v3, 3, v0")
    g("s_cmp_ge_u32 s2, 1744"); g("s_cbranch_scc1 K0_w2")
    g("s_sub_u32 s4, s2, 512"); g("s_mul_hi_u32 s5, s4, 0x24924925"); g("s_mul_i32 s6, s5, 7"); g("s_sub_u32 s6, s4, s6")
    g("s_lshl_b32 s7, s6, 4"); g("v_lshrrev_b32 v4, 4, v0"); g("v_add_u32 v4, s7, v4"); g("v_lshl_add_u32 v4, v4, 2, v2")
    g("s_mul_i32 s30, s5, 28672"); g("s_lshl_b32 s31, s6, 12"); g("s_add_u32 s30, s30, s31")
    g("v_lshlrev_b32 v5, 4, v0")
    g("s_cmp_ge_u32 s5, 128"); g("s_cbranch_scc1 K0_wq")
    g("s_and_b32 s31, s5, 1"); g("s_lshl_b32 s31, s31, 3"); g("s_add_u32 s31, s31, 32"); g("s_load_dwordx2 s[8:9], s[0:1], s31")
    g("s_waitcnt lgkmcnt(0)"); srd(g, 8, 0, 448*3584); srd(g, 24, 9, 0x4000000)
    g("s_lshr_b32 s32, s5, 3"); g("s_mul_i32 s32, s32, 224"); g("s_bfe_u32 s33, s5, 0x20001"); g("s_lshl_b32 s33, s33, 6"); g("s_add_u32 s32, s32, s33")
    g("s_movk_i32 s31, 3584"); g("v_mul_lo_u32 v4, v4, s31"); g("v_lshl_add_u32 v4, v3, 4, v4")
    g("buffer_load_dwordx4 v[8:11], v4, s[8:11], s32 offen"); g(f"s_add_u32 s30, s30, {WS_W13}")
    g("s_waitcnt vmcnt(0)"); g("buffer_store_dwordx4 v[8:11], v5, s[24:27], s30 offen"); g("s_branch K0_done")
    g.lab("K0_wq")
    g("s_load_dwordx2 s[8:9], s[0:1], 8"); g("s_waitcnt lgkmcnt(0)"); srd(g, 8, 0, 448*2688); srd(g, 24, 9, 0x4000000)
    g("s_sub_u32 s5, s5, 128"); g("s_mul_hi_u32 s32, s5, 0x55555556"); g("s_mul_i32 s33, s32, 3"); g("s_sub_u32 s33, s5, s33")
    g("s_mul_i32 s32, s32, 56"); g("s_mul_i32 s33, s33, 896"); g("s_add_u32 s32, s32, s33")
    g("s_movk_i32 s31, 2688"); g("v_mul_lo_u32 v4, v4, s31"); g("v_lshl_add_u32 v4, v3, 4, v4")
    g("buffer_load_dwordx2 v[8:9], v4, s[8:11], s32 offen"); g("buffer_load_dwordx2 v[10:11], v4, s[8:11], s32 offen offset:8")
    g(f"s_add_u32 s30, s30, {WS_WQ - 128*28672}"); g("v_cmp_eq_u32 vcc, 3, v3")
    g("s_waitcnt vmcnt(0)"); g("v_cndmask_b32 v10, v10, 0, vcc"); g("v_cndmask_b32 v11, v11, 0, vcc")
    g("buffer_store_dwordx4 v[8:11], v5, s[24:27], s30 offen"); g("s_branch K0_done")
    g.lab("K0_w2")
    g("v_bfe_u32 v4, v0, 4, 1"); g("v_lshlrev_b32 v4, 3, v4"); g("v_bfe_u32 v6, v0, 5, 1"); g("v_lshl_add_u32 v4, v6, 2, v4"); g("v_add_u32 v4, v4, v2")
    g("v_lshrrev_b32 v6, 6, v0"); g.nop(); g("v_readfirstlane_b32 s6, v6"); g("v_lshlrev_b32 v5, 4, v0")
    g("s_cmp_ge_u32 s2, 2136"); g("s_cbranch_scc1 K0_wo")
    g("s_load_dwordx2 s[8:9], s[0:1], 48"); g("s_waitcnt lgkmcnt(0)"); srd(g, 8, 0, 1792*896); srd(g, 24, 9, 0x4000000)
    g("s_sub_u32 s4, s2, 1744"); g("s_lshl_b32 s5, s4, 2"); g("s_add_u32 s5, s5, s6")
    g("s_mul_hi_u32 s7, s5, 0x1249250"); g("s_mul_i32 s31, s7, 224"); g("s_sub_u32 s31, s5, s31")
    g("s_lshr_b32 s32, s31, 1"); g("s_and_b32 s33, s31, 1")
    g("s_mul_i32 s32, s32, {}".format(16*896)); g("s_lshl_b32 s7, s7, 7"); g("s_lshl_b32 s33, s33, 6"); g("s_add_u32 s32, s32, s7"); g("s_add_u32 s32, s32, s33")
    g("s_movk_i32 s31, 896"); g("v_mul_lo_u32 v4, v4, s31"); g("v_lshl_add_u32 v4, v3, 4, v4")
    g("buffer_load_dwordx4 v[8:11], v4, s[8:11], s32 offen"); g("s_lshl_b32 s30, s4, 12"); g(f"s_add_u32 s30, s30, {WS_W2}")
    g("s_waitcnt vmcnt(0)"); g("buffer_store_dwordx4 v[8:11], v5, s[24:27], s30 offen"); g("s_branch K0_done")
    g.lab("K0_wo")
    g("s_load_dwordx2 s[8:9], s[0:1], 16"); g("s_waitcnt lgkmcnt(0)"); srd(g, 8, 0, 448*896); srd(g, 24, 9, 0x4000000)
    g("s_sub_u32 s4, s2, 2136"); g("s_lshl_b32 s5, s4, 2"); g("s_add_u32 s5, s5, s6")
    g("s_lshr_b32 s7, s5, 5"); g("s_and_b32 s31, s5, 31"); g("s_lshr_b32 s32, s31, 1"); g("s_and_b32 s33, s31, 1")
    g("s_lshl_b32 s33, s33, 4"); g("v_add_u32 v4, s33, v4"); g("v_min_u32 v4, 27, v4")
    g("s_mul_i32 s32, s32, {}".format(28*896)); g("s_lshl_b32 s7, s7, 6"); g("s_add_u32 s32, s32, s7")
    g("s_movk_i32 s31, 896"); g("v_mul_lo_u32 v4, v4, s31"); g("v_lshl_add_u32 v4, v3, 4, v4")
    g("buffer_load_dwordx4 v[8:11], v4, s[8:11], s32 offen"); g("s_lshl_b32 s30, s4, 12"); g(f"s_add_u32 s30, s30, {WS_WO}")
    g("s_waitcnt vmcnt(0)"); g("buffer_store_dwordx4 v[8:11], v5, s[24:27], s30 offen")
    g.lab("K0_done"); g("s_endpgm")
    return g.o

def k1():
    g = G()
    A = 16; BF = 192; T = 216; PK = 224; VV = 232; KVA = 240
    SLAB = 28672; RED = 2*SLAB
    g("s_cmp_ge_u32 s2, 256"); g("s_cbranch_scc1 K1_done")
    g("s_load_dwordx2 s[12:13], s[0:1], 8")
    g("s_load_dwordx2 s[16:17], s[0:1], 32"); g("s_load_dwordx2 s[20:21], s[0:1], 40")
    g("s_load_dwordx2 s[24:25], s[0:1], 72")
    consts(g)
    g("s_bfe_u32 s4, s2, 0x30004"); g("s_and_b32 s5, s2, 15")
    g("v_and_b32 v1, 63, v0"); g("v_lshrrev_b32 v2, 6, v0")
    g.nop(); g("v_readfirstlane_b32 s6, v2")
    g("s_waitcnt lgkmcnt(0)")
    srd(g, 12, 1, 448*2688); srd(g, 16, 4, 448*3584); srd(g, 20, 5, 448*3584); srd(g, 24, 9, 0x4000000)
    g("s_lshl_b32 s7, s4, 8"); g("s_lshl_b32 s30, s6, 5"); g("s_add_u32 s7, s7, s30")
    g("v_and_b32 v3, 31, v1"); g("v_lshrrev_b32 v4, 5, v1")
    g("v_lshlrev_b32 v5, 4, v1")
    g("v_lshrrev_b32 v6, 5, v1"); g("v_lshlrev_b32 v6, 9, v6")
    g("v_bfe_u32 v7, v1, 2, 2"); g("v_lshl_add_u32 v6, v7, 6, v6")
    g("v_bfe_u32 v7, v1, 4, 1"); g("v_lshl_add_u32 v6, v7, 5, v6")
    g("v_and_b32 v7, 3, v1"); g("v_lshl_add_u32 v6, v7, 3, v6")
    g("v_lshrrev_b32 v7, 4, v1"); g("v_lshlrev_b32 v7, 2, v7"); g("v_bfe_u32 v8, v1, 2, 2"); g("v_add_u32 v7, v7, v8")
    g("s_movk_i32 s30, 3584"); g("v_mul_lo_u32 v7, v7, s30"); g("v_and_b32 v8, 3, v1"); g("v_lshl_add_u32 v7, v8, 4, v7")
    g("v_add_u32 v8, s7, v3")
    g("s_lshr_b32 s30, s7, 5"); g("s_lshl_b32 s31, s30, 15"); g("s_lshl_b32 s33, s5, 11"); g("s_add_u32 s31, s31, s33"); g("v_add_u32 v9, s31, v5")
    g(f"s_mul_i32 s31, s30, {112*1024}"); g(f"s_mul_i32 s33, s5, {7*1024}"); g("s_add_u32 s31, s31, s33"); g(f"s_add_u32 s31, s31, {WS_H}"); g("v_add_u32 v15, s31, v5")
    g("s_mul_i32 s35, s5, 224")
    g("s_cmp_ge_u32 s2, 128"); g("s_cbranch_scc1 K1_typeB")
    accs = {0:128, 1:160, 2:128, 3:160, 4:176, 5:128, 6:144, 7:160, 8:176, 9:128, 10:144}
    def path(units):
        state = {"out": []}
        def load_a():
            g("s_lshr_b32 s30, s7, 5"); g("s_mul_i32 s30, s30, 28672"); g(f"s_add_u32 s30, s30, {WS_XN}")
            for k4 in range(7):
                for q in range(4):
                    ks = 4*k4+q
                    g(f"buffer_load_dwordx4 v[{A+4*ks}:{A+4*ks+3}], v5, s[24:27], s30 offen offset:{q*1024}")
                    state["out"].append(("a", ks, 1))
                g("s_add_u32 s30, s30, 4096")
        pos = {u: i for i, u in enumerate(units)}
        def issue_slab(u):
            base = (WS_WQ + u*SLAB) if u < 3 else (WS_W13 + (u-3)*SLAB)
            g(f"s_mul_i32 s39, s5, {(3 if u < 3 else 8)*SLAB}"); g(f"s_add_u32 s39, s39, {base}")
            for q in range(4):
                if q < 3: g(f"s_add_u32 s38, s6, {8*q}")
                else: g("s_and_b32 s38, s6, 3"); g("s_add_u32 s38, s38, 24")
                g(f"s_lshl_b32 s38, s38, 10"); g(f"s_add_u32 s30, s38, {(pos[u]%2)*SLAB}"); g("s_mov_b32 m0, s30")
                g("s_add_u32 s30, s38, s39")
                g(f"buffer_load_dwordx4 v5, s[24:27], s30 offen lds")
            state["out"].append(("slab", u, 4))
        def wait_for(kind, u):
            n = 0; found = False
            for it in state["out"]:
                if found: n += it[2]
                if it[0] == kind and it[1] == u: found = True
            if found: g(f"s_waitcnt vmcnt({n})")
        issue_slab(units[0]); load_a()
        def epilogue(u):
            e = G()
            if u == 0:
                phi_pack(e, accs[0], PK, T)
                e(f"buffer_store_dwordx4 v[{PK}:{PK+3}], v9, s[24:27], 0 offen")
                e(f"buffer_store_dwordx4 v[{PK+4}:{PK+7}], v9, s[24:27], 0 offen offset:1024"); e.nop(1)
            elif u == 1:
                phi_pack(e, accs[1], PK, T)
                e("v_cmp_gt_u32 vcc, 28, v3"); e.nop(1)
                for i in range(8): e(f"v_cndmask_b32 v{PK+i}, 0, v{PK+i}, vcc")
            elif u == 2:
                ac = accs[2]
                for i in range(8): e(f"v_cvt_pk_bf16_f32 v{VV+i}, v{ac+2*i}, v{ac+2*i+1}")
                e("v_cmp_eq_u32 vcc, 28, v3"); e(f"v_mov_b32 v{T}, 0x3f803f80"); e.nop(1)
                for i in range(8): e(f"v_cndmask_b32 v{VV+i}, v{VV+i}, v{T}, vcc")
                for i in range(16): e(f"v_mov_b32 v{KVA+i}, 0")
                e.nop(1)
                e(f"v_mfma_f32_32x32x16_bf16 v[{KVA}:{KVA+15}], v[{PK}:{PK+3}], v[{VV}:{VV+3}], v[{KVA}:{KVA+15}]")
                e(f"v_mfma_f32_32x32x16_bf16 v[{KVA}:{KVA+15}], v[{PK+4}:{PK+7}], v[{VV+4}:{VV+7}], v[{KVA}:{KVA+15}]")
                e.nop(15); e.nop(3)
                e("v_lshlrev_b32 v10, 4, v1"); e("s_lshl_b32 s36, s6, 12"); e(f"s_add_u32 s36, s36, {RED}"); e("v_add_u32 v10, s36, v10")
                for q in range(4): e(f"ds_write_b128 v10, v[{KVA+4*q}:{KVA+4*q+3}] offset:{q*1024}")
                e("s_waitcnt lgkmcnt(0)"); e("s_barrier")
                e("v_lshlrev_b32 v10, 4, v1"); e("s_lshr_b32 s36, s6, 1"); e("s_lshl_b32 s36, s36, 10"); e("s_and_b32 s37, s6, 1"); e("s_lshl_b32 s37, s37, 3")
                e("s_add_u32 s36, s36, s37"); e(f"s_add_u32 s36, s36, {RED}"); e("v_add_u32 v10, s36, v10")
                for w in range(8): e(f"ds_read_b64 v[{KVA+2*w}:{KVA+2*w+1}], v10 offset:{w*4096}")
                e("s_waitcnt lgkmcnt(0)")
                for w in range(1, 8):
                    for i in range(2): e(f"v_add_f32 v{KVA+i}, v{KVA+i}, v{KVA+2*w+i}")
                e("v_lshlrev_b32 v10, 6, v1"); e("s_lshl_b32 s36, s4, 16"); e("s_lshl_b32 s37, s5, 12"); e("s_add_u32 s36, s36, s37")
                e("s_lshl_b32 s37, s6, 3"); e("s_add_u32 s36, s36, s37"); e(f"s_add_u32 s36, s36, {WS_KVP}")
                e(f"buffer_store_dwordx2 v[{KVA}:{KVA+1}], v10, s[24:27], s36 offen"); e.nop(1)
            else:
                p = (u-3)//2; G0, G1 = accs[u-1], accs[u]
                for i in range(0, 16, 2):
                    a, b = G0+i, G0+i+1; c, d = G1+i, G1+i+1
                    rnd2(e, a, b, T); rnd2(e, c, d, T); silu_rnd(e, a, b, T)
                    e(f"v_mul_f32 v{a}, v{a}, v{c}"); e(f"v_mul_f32 v{b}, v{b}, v{d}")
                    e(f"v_cvt_pk_bf16_f32 v{PK+i//2}, v{a}, v{b}")
                e(f"s_movk_i32 s39, {p*2048}"); e(f"buffer_store_dwordx4 v[{PK}:{PK+3}], v15, s[24:27], s39 offen")
                if p < 3: e(f"buffer_store_dwordx4 v[{PK+4}:{PK+7}], v15, s[24:27], s39 offen offset:1024")
                e.nop(1)
            return e.o
        D = 4; NB = 6
        pend = []
        for idx, u in enumerate(units):
            wait_for("slab", u)
            g("s_waitcnt lgkmcnt(0)"); g("s_barrier")
            nxt = units[idx+1] if idx+1 < len(units) else None
            if nxt is not None: issue_slab(nxt)
            acc = accs[u]
            for i in range(16): g(f"v_mov_b32 v{acc+i}, 0")
            g(f"v_add_u32 v2, {(idx%2)*SLAB}, v6")
            def rd(ks):
                b = BF + 4*(ks % NB)
                g(f"ds_read_b64_tr_b16 v[{b}:{b+1}], v2 offset:{ks*1024}")
                g(f"ds_read_b64_tr_b16 v[{b+2}:{b+3}], v2 offset:{ks*1024+256}")
            for ks in range(D): rd(ks)
            nslots = 27 if u < 3 or (u-3)&1 else 55
            per = -(-len(pend) // nslots) if pend else 0
            def emit(ls):
                for l in ls:
                    g.o.append(l)
                    if "buffer_store" in l: state["out"].append(("st", u, 1))
            for ks in range(28):
                if ks + D < 28: rd(ks+D)
                if idx == 0: wait_for("a", ks)
                g(f"s_waitcnt lgkmcnt({2*min(D, 27-ks)})")
                b = BF + 4*(ks % NB); a = A + 4*ks
                if u == 0 or u >= 3:
                    g(f"v_mfma_f32_32x32x16_bf16 v[{acc}:{acc+15}], v[{b}:{b+3}], v[{a}:{a+3}], v[{acc}:{acc+15}]")
                else:
                    g(f"v_mfma_f32_32x32x16_bf16 v[{acc}:{acc+15}], v[{a}:{a+3}], v[{b}:{b+3}], v[{acc}:{acc+15}]")
                if ks >= 1:
                    chunk, pend = pend[:per], pend[per:]; emit(chunk)
            if u < 3 or (u-3)&1:
                emit(pend); pend = epilogue(u)
        g.nop(15); g.nop(3)
        g.o += pend
    path([0, 1, 2, 3, 4]); g("s_branch K1_done")
    g.lab("K1_typeB"); path([5, 6, 7, 8, 9, 10])
    g.lab("K1_done"); g("s_endpgm")
    return g.o

def k2():
    g = G()
    ACC = 64; HF = 128; BF = 192; T = 224
    g("s_cmp_ge_u32 s2, 240"); g("s_cbranch_scc1 K2_done")
    g("s_load_dwordx2 s[8:9], s[0:1], 48"); g("s_load_dwordx2 s[24:25], s[0:1], 72")
    consts(g)
    g("v_and_b32 v1, 63, v0"); g("v_lshrrev_b32 v2, 6, v0"); g.nop(); g("v_readfirstlane_b32 s6, v2")
    g("s_waitcnt lgkmcnt(0)")
    srd(g, 8, 6, 1792*896); srd(g, 24, 9, 0x4000000)
    g("s_cmp_lt_u32 s2, 224"); g("s_cbranch_scc1 K2_gemm")
    g("s_cmp_lg_u32 s6, 0"); g("s_cbranch_scc1 K2_done")
    g("s_sub_u32 s4, s2, 224"); g("v_lshlrev_b32 v3, 6, v1")
    for i in range(16): g(f"v_mov_b32 v{16+i}, 0")
    for rb in range(8):
        g("s_lshl_b32 s30, s4, 12"); g(f"s_add_u32 s30, s30, {WS_KVP + rb*65536}")
        for q in range(4): g(f"buffer_load_dwordx4 v[{64+16*rb+4*q}:{67+16*rb+4*q}], v3, s[24:27], s30 offen offset:{q*16}")
    g("s_waitcnt vmcnt(0)")
    for rb in range(8):
        for i in range(16): g(f"v_add_f32 v{16+i}, v{16+i}, v{64+16*rb+i}")
    for i in range(8): g(f"v_cvt_pk_bf16_f32 v{48+i}, v{16+2*i}, v{17+2*i}")
    g("v_lshlrev_b32 v3, 5, v1"); g("s_lshl_b32 s30, s4, 11"); g(f"s_add_u32 s30, s30, {WS_KV}")
    g("buffer_store_dwordx4 v[48:51], v3, s[24:27], s30 offen"); g("buffer_store_dwordx4 v[52:55], v3, s[24:27], s30 offen offset:16")
    g("s_branch K2_done")
    g.lab("K2_gemm")
    g("s_and_b32 s4, s2, 31"); g("s_lshr_b32 s5, s2, 5")
    g("v_and_b32 v3, 31, v1"); g("v_lshrrev_b32 v4, 5, v1")
    g("s_lshl_b32 s7, s4, 6"); g("v_lshlrev_b32 v5, 4, v1"); g(f"s_mul_i32 s30, s4, {2*112*1024}")
    g(f"s_mul_i32 s33, s6, {14*1024}"); g("s_add_u32 s30, s30, s33"); g(f"s_add_u32 s30, s30, {WS_H}"); g("v_add_u32 v5, s30, v5")
    g(f"v_add_u32 v8, {112*1024}, v5")
    g("v_lshrrev_b32 v6, 5, v1"); g("v_lshlrev_b32 v6, 9, v6")
    g("v_bfe_u32 v7, v1, 2, 2"); g("v_lshl_add_u32 v6, v7, 6, v6")
    g("v_bfe_u32 v7, v1, 4, 1"); g("v_lshl_add_u32 v6, v7, 5, v6")
    g("v_and_b32 v7, 3, v1"); g("v_lshl_add_u32 v6, v7, 3, v6"); g("s_lshl_b32 s31, s6, 14"); g("v_add_u32 v6, s31, v6")
    g("v_bfe_u32 v7, v1, 4, 1"); g("v_lshlrev_b32 v7, 3, v7"); g("v_lshrrev_b32 v9, 5, v1"); g("v_lshl_add_u32 v7, v9, 2, v7")
    g("v_bfe_u32 v9, v1, 2, 2"); g("v_add_u32 v7, v7, v9"); g("s_movk_i32 s30, 896"); g("v_mul_lo_u32 v7, v7, s30")
    g("v_and_b32 v9, 3, v1"); g("v_lshl_add_u32 v7, v9, 4, v7")
    g("v_lshlrev_b32 v7, 4, v1")
    g("s_mul_i32 s32, s6, {}".format(14*2048)); g("s_mul_i32 s30, s5, {}".format(224*1024)); g("s_add_u32 s32, s32, s30"); g(f"s_add_u32 s32, s32, {WS_W2}")
    for i in range(64): g(f"v_mov_b32 v{ACC+i}, 0")
    P = 7
    def issue(ks):
        for un in range(2):
            g(f"s_add_u32 s30, s31, {(ks%8)*2048 + un*1024}"); g("s_mov_b32 m0, s30")
            g(f"s_add_u32 s30, s32, {ks*2048 + un*1024}")
            g(f"buffer_load_dwordx4 v7, s[24:27], s30 offen lds")
        h = HF + 8*(ks % 8)
        g(f"s_movk_i32 s30, {ks*1024}")
        g(f"buffer_load_dwordx4 v[{h}:{h+3}], v5, s[24:27], s30 offen")
        g(f"buffer_load_dwordx4 v[{h+4}:{h+7}], v8, s[24:27], s30 offen")
    for ks in range(P): issue(ks)
    for ks in range(14):
        if ks + P < 14: issue(ks+P)
        g(f"s_waitcnt vmcnt({4*min(P, 13-ks)})")
        o = (ks%8)*2048
        for un in range(2):
            g(f"ds_read_b64_tr_b16 v[{BF+4*un}:{BF+4*un+1}], v6 offset:{o+un*1024}")
            g(f"ds_read_b64_tr_b16 v[{BF+4*un+2}:{BF+4*un+3}], v6 offset:{o+un*1024+256}")
        g("s_waitcnt lgkmcnt(0)")
        h = HF + 8*(ks % 8)
        for un in range(2):
            for t in range(2):
                a = ACC + 16*(2*un+t)
                g(f"v_mfma_f32_32x32x16_bf16 v[{a}:{a+15}], v[{BF+4*un}:{BF+4*un+3}], v[{h+4*t}:{h+4*t+3}], v[{a}:{a+15}]")
    g.nop(15); g.nop(3)
    g("s_barrier")
    g("v_lshlrev_b32 v10, 4, v1"); g("s_lshl_b32 s30, s6, 14"); g("v_add_u32 v10, s30, v10")
    for q in range(16): g(f"ds_write_b128 v10, v[{ACC+4*q}:{ACC+4*q+3}] offset:{q*1024}")
    g("s_waitcnt lgkmcnt(0)"); g("s_barrier")
    g("v_lshlrev_b32 v10, 4, v1"); g("s_lshr_b32 s30, s6, 1"); g("s_lshl_b32 s30, s30, 12"); g("s_and_b32 s33, s6, 1"); g("s_lshl_b32 s33, s33, 11")
    g("s_add_u32 s30, s30, s33"); g("v_add_u32 v10, s30, v10"); g("v_add_u32 v11, 0x10000, v10")
    for w in range(8):
        for q in range(2): g(f"ds_read_b128 v[{ACC+8*w+4*q}:{ACC+8*w+4*q+3}], v{10 if w < 4 else 11} offset:{(w%4)*16384+q*1024}")
    g("s_waitcnt lgkmcnt(0)")
    for w in range(1, 8):
        for i in range(8): g(f"v_add_f32 v{ACC+i}, v{ACC+i}, v{ACC+8*w+i}")
    for i in range(0, 8, 2):
        rnd2(g, ACC+i, ACC+i+1, T); silu_rnd(g, ACC+i, ACC+i+1, T)
        g(f"v_cvt_pk_bf16_f32 v{BF+i//2}, v{ACC+i}, v{ACC+i+1}")
    g("s_bfe_u32 s30, s6, 0x10001"); g("s_lshl_b32 s33, s4, 1"); g("s_add_u32 s30, s30, s33"); g(f"s_mul_i32 s30, s30, {28*1024}")
    g("v_lshlrev_b32 v10, 4, v1")
    g("s_lshr_b32 s33, s6, 2"); g("s_lshl_b32 s33, s33, 11"); g("s_add_u32 s30, s30, s33"); g("s_lshl_b32 s33, s5, 12"); g("s_add_u32 s30, s30, s33"); g(f"s_add_u32 s30, s30, {WS_G}")
    g("s_and_b32 s33, s6, 1"); g("s_lshl_b32 s33, s33, 10"); g("s_add_u32 s30, s30, s33")
    g(f"buffer_store_dwordx4 v[{BF}:{BF+3}], v10, s[24:27], s30 offen")
    g.lab("K2_done"); g("s_endpgm")
    return g.o

def k3():
    g = G()
    ACC = 64; PQF = 96; KVF = 112; BF = 128; OF = 144; T = 160; GX = 176
    g("s_cmp_ge_u32 s2, 128"); g("s_cbranch_scc1 K3_done")
    g("s_load_dwordx2 s[8:9], s[0:1], 16"); g("s_load_dwordx2 s[12:13], s[0:1], 0"); g("s_load_dwordx2 s[16:17], s[0:1], 56")
    g("s_load_dwordx2 s[24:25], s[0:1], 72")
    consts(g)
    g("v_and_b32 v1, 63, v0"); g("v_lshrrev_b32 v2, 6, v0"); g.nop(); g("v_readfirstlane_b32 s6, v2")
    g("s_waitcnt lgkmcnt(0)")
    srd(g, 8, 2, 448*896); srd(g, 12, 0, 2048*896); srd(g, 16, 7, 2048*896); srd(g, 24, 9, 0x4000000)
    g("s_and_b32 s4, s2, 63"); g("s_lshr_b32 s5, s2, 6"); g("s_lshl_b32 s7, s4, 5")
    g("v_and_b32 v3, 31, v1"); g("v_lshrrev_b32 v4, 5, v1")
    g("v_lshlrev_b32 v5, 4, v1"); g("s_lshl_b32 s30, s4, 15"); g("v_add_u32 v5, s30, v5")
    g("v_lshlrev_b32 v8, 5, v1")
    g("v_add_u32 v14, 32, v3"); g("v_lshlrev_b32 v14, 2, v14")
    g("v_lshlrev_b32 v10, 4, v1"); g(f"v_add_u32 v10, {8*16384}, v10")
    for hh in range(2):
        g("s_lshl_b32 s30, s6, 12"); g(f"s_add_u32 s30, s30, {hh*2048}")
        g(f"buffer_load_dwordx4 v[{PQF+8*hh}:{PQF+8*hh+3}], v5, s[24:27], s30 offen"); g(f"buffer_load_dwordx4 v[{PQF+8*hh+4}:{PQF+8*hh+7}], v5, s[24:27], s30 offen offset:1024")
        g("s_lshl_b32 s30, s6, 12"); g(f"s_add_u32 s30, s30, {WS_KV + hh*2048}")
        g(f"buffer_load_dwordx4 v[{KVF+8*hh}:{KVF+8*hh+3}], v8, s[24:27], s30 offen"); g(f"buffer_load_dwordx4 v[{KVF+8*hh+4}:{KVF+8*hh+7}], v8, s[24:27], s30 offen offset:16")
    g("v_lshrrev_b32 v6, 5, v1"); g("v_lshlrev_b32 v6, 9, v6")
    g("v_bfe_u32 v7, v1, 2, 2"); g("v_lshl_add_u32 v6, v7, 6, v6")
    g("v_bfe_u32 v7, v1, 4, 1"); g("v_lshl_add_u32 v6, v7, 5, v6")
    g("v_and_b32 v7, 3, v1"); g("v_lshl_add_u32 v6, v7, 3, v6"); g("s_lshl_b32 s31, s6, 14"); g("v_add_u32 v6, s31, v6")
    g("v_bfe_u32 v7, v1, 4, 1"); g("v_lshlrev_b32 v7, 3, v7"); g("v_lshrrev_b32 v9, 5, v1"); g("v_lshl_add_u32 v7, v9, 2, v7")
    g("v_bfe_u32 v9, v1, 2, 2"); g("v_add_u32 v7, v7, v9")
    g("v_add_u32 v12, 16, v7"); g("v_min_u32 v12, 27, v12")
    g("s_movk_i32 s30, 896"); g("v_mul_lo_u32 v7, v7, s30"); g("v_mul_lo_u32 v12, v12, s30")
    g("v_and_b32 v9, 3, v1"); g("v_lshl_add_u32 v7, v9, 4, v7"); g("v_lshl_add_u32 v12, v9, 4, v12")
    g("v_add_u32 v13, s7, v3"); g("s_movk_i32 s30, 896"); g("v_mul_lo_u32 v13, v13, s30")
    g("s_min_u32 s34, s6, 6")
    g("s_mul_i32 s33, s5, 7"); g("s_add_u32 s33, s33, s34"); g("s_lshl_b32 s32, s33, 6")
    g(f"s_mul_i32 s30, s4, {28*1024}"); g("s_lshl_b32 s35, s33, 11"); g("s_add_u32 s30, s30, s35"); g(f"s_add_u32 s30, s30, {WS_G}"); g("v_lshlrev_b32 v11, 4, v1")
    g(f"buffer_load_dwordx4 v[{GX}:{GX+3}], v11, s[24:27], s30 offen"); g(f"buffer_load_dwordx4 v[{GX+4}:{GX+7}], v11, s[24:27], s30 offen offset:1024")
    g("v_lshl_add_u32 v11, v4, 3, v13")
    for q in range(4): g(f"buffer_load_dwordx2 v[{GX+8+2*q}:{GX+9+2*q}], v11, s[12:15], s32 offen offset:{q*16}")
    P = 15
    g("v_lshlrev_b32 v7, 4, v1"); g("s_lshl_b32 s36, s33, 15"); g(f"s_add_u32 s36, s36, {WS_WO}")
    def issue(ks):
        g(f"s_add_u32 s30, s31, {(ks%16)*1024}"); g("s_mov_b32 m0, s30")
        g(f"s_add_u32 s30, s36, {ks*1024}")
        g(f"buffer_load_dwordx4 v7, s[24:27], s30 offen lds")
    for ks in range(P): issue(ks)
    g(f"s_waitcnt vmcnt({6+P})")
    for hh in range(2):
        a = ACC + 16*hh
        for i in range(16): g(f"v_mov_b32 v{a+i}, 0")
        g.nop(1)
        g(f"v_mfma_f32_32x32x16_bf16 v[{a}:{a+15}], v[{KVF+8*hh}:{KVF+8*hh+3}], v[{PQF+8*hh}:{PQF+8*hh+3}], v[{a}:{a+15}]")
        g(f"v_mfma_f32_32x32x16_bf16 v[{a}:{a+15}], v[{KVF+8*hh+4}:{KVF+8*hh+7}], v[{PQF+8*hh+4}:{PQF+8*hh+7}], v[{a}:{a+15}]")
    g.nop(15); g.nop(3)
    for hh in range(2):
        a = ACC + 16*hh
        g(f"ds_bpermute_b32 v{T}, v14, v{a+12}"); g("s_waitcnt lgkmcnt(0)")
        rnd2(g, T, T+1, T+2); g(f"v_add_f32 v{T}, s91, v{T}"); rnd2(g, T, T+1, T+2)
        g(f"v_rcp_f32 v{T}, v{T}"); g.nop()
        for i in range(0, 16, 2):
            rnd2(g, a+i, a+i+1, T+2)
            g(f"v_mul_f32 v{a+i}, v{a+i}, v{T}"); g(f"v_mul_f32 v{a+i+1}, v{a+i+1}, v{T}")
            g(f"v_cvt_pk_bf16_f32 v{OF+i//2}, v{a+i}, v{a+i+1}")
        g("v_cmp_eq_u32 vcc, 0, v4"); g.nop(1)
        g(f"v_cndmask_b32 v{OF+6}, 0, v{OF+6}, vcc"); g(f"v_cndmask_b32 v{OF+7}, 0, v{OF+7}, vcc")
        g("s_lshl_b32 s30, s6, 12"); g(f"v_add_u32 v15, s30, v10")
        g(f"ds_write_b128 v15, v[{OF}:{OF+3}] offset:{hh*2048}"); g(f"ds_write_b128 v15, v[{OF+4}:{OF+7}] offset:{hh*2048+1024}")
    g("s_waitcnt lgkmcnt(0)"); g("s_barrier")
    g("s_cmp_eq_u32 s6, 7"); g("s_cbranch_scc1 K3_done")
    for i in range(16): g(f"v_mov_b32 v{ACC+i}, 0")
    for ks in range(32):
        if ks + P < 32: issue(ks+P)
        g(f"s_waitcnt vmcnt({min(P, 31-ks)})")
        o = (ks%16)*1024; b = BF + 8*(ks%2)
        g(f"ds_read_b64_tr_b16 v[{b}:{b+1}], v6 offset:{o}"); g(f"ds_read_b64_tr_b16 v[{b+2}:{b+3}], v6 offset:{o+256}")
        g(f"ds_read_b128 v[{b+4}:{b+7}], v10 offset:{ks*1024}")
        g("s_waitcnt lgkmcnt(0)")
        g(f"v_mfma_f32_32x32x16_bf16 v[{ACC}:{ACC+15}], v[{b}:{b+3}], v[{b+4}:{b+7}], v[{ACC}:{ACC+15}]")
    g.nop(15); g.nop(3)
    for i in range(0, 16, 2):
        a, b = ACC+i, ACC+i+1
        rnd2(g, a, b, T)
        g(f"v_lshlrev_b32 v{T}, 16, v{GX+i//2}"); g(f"v_and_b32 v{T+1}, 0xffff0000, v{GX+i//2}")
        g(f"v_mul_f32 v{a}, v{a}, v{T}"); g(f"v_mul_f32 v{b}, v{b}, v{T+1}")
        rnd2(g, a, b, T)
        g(f"v_lshlrev_b32 v{T}, 16, v{GX+8+i//2}"); g(f"v_and_b32 v{T+1}, 0xffff0000, v{GX+8+i//2}")
        g(f"v_add_f32 v{a}, v{a}, v{T}"); g(f"v_add_f32 v{b}, v{b}, v{T+1}")
        g(f"v_cvt_pk_bf16_f32 v{GX+8+i//2}, v{a}, v{b}")
    for q in range(4): g(f"buffer_store_dwordx2 v[{GX+8+2*q}:{GX+9+2*q}], v11, s[16:19], s32 offen offset:{q*16}")
    g.lab("K3_done"); g("s_endpgm")
    return g.o

hdr = open(f"cdna_kernels/{NAME}.s.ref").read().split("; Override")[0]
out = hdr
out += "; @launch kernel=k0_kernel grid=(2248,1,1) block=(256,1,1) lds=0\n"
out += "; @launch kernel=k1_kernel grid=(256,1,1) block=(512,1,1) lds=90112\n"
out += "; @launch kernel=k2_kernel grid=(240,1,1) block=(512,1,1) lds=131072\n"
out += "; @launch kernel=k3_kernel grid=(128,1,1) block=(512,1,1) lds=163840\n"
out += '.amdgcn_target "amdgcn-amd-amdhsa--gfx950"\n.text\n'
for nm, f in (("k0_kernel", k0), ("k1_kernel", k1), ("k2_kernel", k2), ("k3_kernel", k3)):
    out += f".globl {nm}\n.p2align 8\n.type {nm},@function\n{nm}:\n" + "\n".join(f()) + "\n"
out += kdesc("k0_kernel", 32) + kdesc("k1_kernel", 256) + kdesc("k2_kernel", 256) + kdesc("k3_kernel", 256)
open(f"cdna_kernels/{NAME}.s", "w").write(out)
```

```python
import sys
NAME = "recurrent_scan__linear_attn_block__glu_gated_swiglu__prompt"
WS_PQ = 0x000000; WS_H = 0x200000; WS_KVP = 0xA00000; WS_KV = 0xB00000; WS_G = 0xC00000
L2E = 0x3fb8aa3b
EPS6 = 0x358637bd

class G:
    def __init__(s): s.o = []
    def __call__(s, t): s.o.append("    " + t)
    def lab(s, t): s.o.append(t + ":")
    def nop(s, n=0): s(f"s_nop {n}")

def srd(g, d, slot, nbytes, base_add=0):
    if base_add:
        g(f"s_add_u32 s{d}, s{d}, {base_add}"); g(f"s_addc_u32 s{d+1}, s{d+1}, 0")
    g(f"s_and_b32 s{d+1}, s{d+1}, 0xffff")
    g(f"s_mov_b32 s{d+2}, {nbytes}"); g(f"s_mov_b32 s{d+3}, 0x20000")

def rnd2(g, a, b, t):
    g(f"v_cvt_pk_bf16_f32 v{t}, v{a}, v{b}")
    g(f"v_lshlrev_b32 v{a}, 16, v{t}")
    g(f"v_and_b32 v{b}, 0xffff0000, v{t}")

def phi_pack(g, acc, out, t):
    for i in range(0, 16, 2):
        a, b = acc+i, acc+i+1
        rnd2(g, a, b, t)
        g(f"v_mul_f32 v{t}, s90, v{a}"); g(f"v_mul_f32 v{t+1}, s90, v{b}")
        g(f"v_exp_f32 v{t}, v{t}"); g(f"v_exp_f32 v{t+1}, v{t+1}")
        g(f"v_add_f32 v{t+2}, 1.0, v{a}"); g(f"v_add_f32 v{t+3}, 1.0, v{b}")
        g(f"v_cmp_lt_f32 vcc, 0, v{a}"); g.nop(1)
        g(f"v_cndmask_b32 v{a}, v{t}, v{t+2}, vcc")
        g(f"v_cmp_lt_f32 vcc, 0, v{b}"); g.nop(1)
        g(f"v_cndmask_b32 v{b}, v{t+1}, v{t+3}, vcc")
        rnd2(g, a, b, t)
        g(f"v_add_f32 v{a}, s91, v{a}"); g(f"v_add_f32 v{b}, s91, v{b}")
        g(f"v_cvt_pk_bf16_f32 v{out+i//2}, v{a}, v{b}")

def silu_rnd(g, a, b, t):
    for r, tt in ((a, t), (b, t+1)):
        g(f"v_mul_f32 v{tt}, s92, v{r}")
        g(f"v_exp_f32 v{tt}, v{tt}"); g.nop()
        g(f"v_add_f32 v{tt}, 1.0, v{tt}")
        g(f"v_rcp_f32 v{tt}, v{tt}"); g.nop()
        g(f"v_mul_f32 v{r}, v{r}, v{tt}")
    rnd2(g, a, b, t)

def consts(g):
    g(f"s_mov_b32 s90, {L2E}"); g(f"s_mov_b32 s91, {EPS6}"); g(f"s_mov_b32 s92, {L2E | 0x80000000}")

def kdesc(name, vg, sg=100):
    return f""".section .rodata,"a"
.p2align 6
.amdhsa_kernel {name}
  .amdhsa_next_free_vgpr {vg}
  .amdhsa_next_free_sgpr {sg}
  .amdhsa_accum_offset {vg}
  .amdhsa_group_segment_fixed_size 0
  .amdhsa_kernarg_size 80
  .amdhsa_user_sgpr_count 2
  .amdhsa_user_sgpr_kernarg_segment_ptr 1
  .amdhsa_system_sgpr_workgroup_id_x 1
.end_amdhsa_kernel
"""

WS_XN = 0xE00000
WS_W13 = 0x1000000; WS_WQ = 0x1400000; WS_W2 = 0x1600000; WS_WO = 0x1800000
def k0():
    g = G()
    g("s_cmp_ge_u32 s2, 2248"); g("s_cbranch_scc1 K0_done")
    g("s_cmp_ge_u32 s2, 512"); g("s_cbranch_scc1 K0_rep")
    g("s_load_dwordx2 s[8:9], s[0:1], 0"); g("s_load_dwordx2 s[24:25], s[0:1], 72")
    g("v_and_b32 v1, 63, v0"); g("v_lshrrev_b32 v2, 6, v0"); g.nop(); g("v_readfirstlane_b32 s6, v2")
    g("s_waitcnt lgkmcnt(0)")
    srd(g, 8, 0, 2048*896); srd(g, 24, 9, 0x4000000)
    g("s_lshl_b32 s4, s2, 2"); g("s_add_u32 s4, s4, s6")
    g("s_mul_i32 s5, s4, 896"); g("v_lshlrev_b32 v3, 4, v1")
    g("v_cmp_gt_u32 s[32:33], 56, v1")
    g("v_min_u32 v3, 880, v3")
    g("buffer_load_dwordx4 v[4:7], v3, s[8:11], s5 offen")
    g("s_waitcnt vmcnt(0)")
    for q in range(4): g(f"v_cndmask_b32 v{4+q}, 0, v{4+q}, s[32:33]")
    for q in range(4):
        g(f"v_lshlrev_b32 v{8+2*q}, 16, v{4+q}"); g(f"v_and_b32 v{9+2*q}, 0xffff0000, v{4+q}")
    def wavesum(r):
        for m in (1, 2, 4, 8, 16):
            g(f"ds_swizzle_b32 v20, v{r} offset:{(m<<10)|0x1f}"); g("s_waitcnt lgkmcnt(0)"); g(f"v_add_f32 v{r}, v{r}, v20")
        g(f"ds_bpermute_b32 v20, v21, v{r}"); g("s_waitcnt lgkmcnt(0)"); g(f"v_add_f32 v{r}, v{r}, v20")
    g("v_lshlrev_b32 v21, 2, v1"); g("v_xor_b32 v21, 128, v21")
    g("v_pk_add_f32 v[16:17], v[8:9], v[10:11]"); g("v_pk_add_f32 v[18:19], v[12:13], v[14:15]")
    g("v_pk_add_f32 v[16:17], v[16:17], v[18:19]"); g("v_add_f32 v16, v16, v17")
    wavesum(16)
    g("v_mul_f32 v16, 0x3b124925, v16"); g("v_mov_b32 v17, v16")
    for q in range(4): g(f"v_pk_add_f32 v[{24+2*q}:{25+2*q}], v[{8+2*q}:{9+2*q}], v[16:17] neg_lo:[0,1] neg_hi:[0,1]")
    g("v_pk_mul_f32 v[18:19], v[24:25], v[24:25]")
    for q in range(1, 4): g(f"v_pk_fma_f32 v[18:19], v[{24+2*q}:{25+2*q}], v[{24+2*q}:{25+2*q}], v[18:19]")
    g("v_add_f32 v18, v18, v19"); g("v_cndmask_b32 v18, 0, v18, s[32:33]")
    wavesum(18)
    g("v_mul_f32 v18, 0x3b124925, v18")
    rnd2(g, 18, 16, 22)
    g("v_add_f32 v18, 0x3727c5ac, v18"); rnd2(g, 18, 19, 22)
    g("v_sqrt_f32 v18, v18"); g.nop(); rnd2(g, 18, 19, 22)
    g("v_rcp_f32 v18, v18"); g.nop(); g("v_mov_b32 v19, v18"); g("v_mov_b32 v17, v16")
    for q in range(4):
        g(f"v_pk_add_f32 v[{8+2*q}:{9+2*q}], v[{8+2*q}:{9+2*q}], v[16:17] neg_lo:[0,1] neg_hi:[0,1]")
        g(f"v_cvt_pk_bf16_f32 v{4+q}, v{8+2*q}, v{9+2*q}")
        g(f"v_lshlrev_b32 v{8+2*q}, 16, v{4+q}"); g(f"v_and_b32 v{9+2*q}, 0xffff0000, v{4+q}")
        g(f"v_pk_mul_f32 v[{8+2*q}:{9+2*q}], v[{8+2*q}:{9+2*q}], v[18:19]")
        g(f"v_cvt_pk_bf16_f32 v{4+q}, v{8+2*q}, v{9+2*q}")
    g("v_lshrrev_b32 v3, 1, v1"); g("v_lshlrev_b32 v3, 10, v3"); g("v_and_b32 v2, 1, v1"); g("v_lshl_add_u32 v3, v2, 9, v3")
    g("s_lshr_b32 s30, s4, 5"); g("s_mul_i32 s30, s30, 28672"); g("s_and_b32 s31, s4, 31"); g("s_lshl_b32 s31, s31, 4")
    g("s_add_u32 s30, s30, s31"); g(f"s_add_u32 s30, s30, {WS_XN}")
    g("s_and_saveexec_b64 s[34:35], s[32:33]")
    g("buffer_store_dwordx4 v[4:7], v3, s[24:27], s30 offen")
    g("s_branch K0_done")
    g.lab("K0_rep")
    g("s_load_dwordx2 s[24:25], s[0:1], 72")
    g("v_bfe_u32 v2, v0, 2, 2"); g("v_and_b32 v3, 3, v0")
    g("s_cmp_ge_u32 s2, 1744"); g("s_cbranch_scc1 K0_w2")
    g("s_sub_u32 s4, s2, 512"); g("s_mul_hi_u32 s5, s4, 0x24924925"); g("s_mul_i32 s6, s5, 7"); g("s_sub_u32 s6, s4, s6")
    g("s_lshl_b32 s7, s6, 4"); g("v_lshrrev_b32 v4, 4, v0"); g("v_add_u32 v4, s7, v4"); g("v_lshl_add_u32 v4, v4, 2, v2")
    g("s_mul_i32 s30, s5, 28672"); g("s_lshl_b32 s31, s6, 12"); g("s_add_u32 s30, s30, s31")
    g("v_lshlrev_b32 v5, 4, v0")
    g("s_cmp_ge_u32 s5, 128"); g("s_cbranch_scc1 K0_wq")
    g("s_and_b32 s31, s5, 1"); g("s_lshl_b32 s31, s31, 3"); g("s_add_u32 s31, s31, 32"); g("s_load_dwordx2 s[8:9], s[0:1], s31")
    g("s_waitcnt lgkmcnt(0)"); srd(g, 8, 0, 448*3584); srd(g, 24, 9, 0x4000000)
    g("s_lshr_b32 s32, s5, 3"); g("s_mul_i32 s32, s32, 224"); g("s_bfe_u32 s33, s5, 0x20001"); g("s_lshl_b32 s33, s33, 6"); g("s_add_u32 s32, s32, s33")
    g("s_movk_i32 s31, 3584"); g("v_mul_lo_u32 v4, v4, s31"); g("v_lshl_add_u32 v4, v3, 4, v4")
    g("buffer_load_dwordx4 v[8:11], v4, s[8:11], s32 offen"); g(f"s_add_u32 s30, s30, {WS_W13}")
    g("s_waitcnt vmcnt(0)"); g("buffer_store_dwordx4 v[8:11], v5, s[24:27], s30 offen"); g("s_branch K0_done")
    g.lab("K0_wq")
    g("s_load_dwordx2 s[8:9], s[0:1], 8"); g("s_waitcnt lgkmcnt(0)"); srd(g, 8, 0, 448*2688); srd(g, 24, 9, 0x4000000)
    g("s_sub_u32 s5, s5, 128"); g("s_mul_hi_u32 s32, s5, 0x55555556"); g("s_mul_i32 s33, s32, 3"); g("s_sub_u32 s33, s5, s33")
    g("s_mul_i32 s32, s32, 56"); g("s_mul_i32 s33, s33, 896"); g("s_add_u32 s32, s32, s33")
    g("s_movk_i32 s31, 2688"); g("v_mul_lo_u32 v4, v4, s31"); g("v_lshl_add_u32 v4, v3, 4, v4")
    g("buffer_load_dwordx2 v[8:9], v4, s[8:11], s32 offen"); g("buffer_load_dwordx2 v[10:11], v4, s[8:11], s32 offen offset:8")
    g(f"s_add_u32 s30, s30, {WS_WQ - 128*28672}"); g("v_cmp_eq_u32 vcc, 3, v3")
    g("s_waitcnt vmcnt(0)"); g("v_cndmask_b32 v10, v10, 0, vcc"); g("v_cndmask_b32 v11, v11, 0, vcc")
    g("buffer_store_dwordx4 v[8:11], v5, s[24:27], s30 offen"); g("s_branch K0_done")
    g.lab("K0_w2")
    g("v_bfe_u32 v4, v0, 4, 1"); g("v_lshlrev_b32 v4, 3, v4"); g("v_bfe_u32 v6, v0, 5, 1"); g("v_lshl_add_u32 v4, v6, 2, v4"); g("v_add_u32 v4, v4, v2")
    g("v_lshrrev_b32 v6, 6, v0"); g.nop(); g("v_readfirstlane_b32 s6, v6"); g("v_lshlrev_b32 v5, 4, v0")
    g("s_cmp_ge_u32 s2, 2136"); g("s_cbranch_scc1 K0_wo")
    g("s_load_dwordx2 s[8:9], s[0:1], 48"); g("s_waitcnt lgkmcnt(0)"); srd(g, 8, 0, 1792*896); srd(g, 24, 9, 0x4000000)
    g("s_sub_u32 s4, s2, 1744"); g("s_lshl_b32 s5, s4, 2"); g("s_add_u32 s5, s5, s6")
    g("s_mul_hi_u32 s7, s5, 0x1249250"); g("s_mul_i32 s31, s7, 224"); g("s_sub_u32 s31, s5, s31")
    g("s_lshr_b32 s32, s31, 1"); g("s_and_b32 s33, s31, 1")
    g("s_mul_i32 s32, s32, {}".format(16*896)); g("s_lshl_b32 s7, s7, 7"); g("s_lshl_b32 s33, s33, 6"); g("s_add_u32 s32, s32, s7"); g("s_add_u32 s32, s32, s33")
    g("s_movk_i32 s31, 896"); g("v_mul_lo_u32 v4, v4, s31"); g("v_lshl_add_u32 v4, v3, 4, v4")
    g("buffer_load_dwordx4 v[8:11], v4, s[8:11], s32 offen"); g("s_lshl_b32 s30, s4, 12"); g(f"s_add_u32 s30, s30, {WS_W2}")
    g("s_waitcnt vmcnt(0)"); g("buffer_store_dwordx4 v[8:11], v5, s[24:27], s30 offen"); g("s_branch K0_done")
    g.lab("K0_wo")
    g("s_load_dwordx2 s[8:9], s[0:1], 16"); g("s_waitcnt lgkmcnt(0)"); srd(g, 8, 0, 448*896); srd(g, 24, 9, 0x4000000)
    g("s_sub_u32 s4, s2, 2136"); g("s_lshl_b32 s5, s4, 2"); g("s_add_u32 s5, s5, s6")
    g("s_lshr_b32 s7, s5, 5"); g("s_and_b32 s31, s5, 31"); g("s_lshr_b32 s32, s31, 1"); g("s_and_b32 s33, s31, 1")
    g("s_lshl_b32 s33, s33, 4"); g("v_add_u32 v4, s33, v4"); g("v_min_u32 v4, 27, v4")
    g("s_mul_i32 s32, s32, {}".format(28*896)); g("s_lshl_b32 s7, s7, 6"); g("s_add_u32 s32, s32, s7")
    g("s_movk_i32 s31, 896"); g("v_mul_lo_u32 v4, v4, s31"); g("v_lshl_add_u32 v4, v3, 4, v4")
    g("buffer_load_dwordx4 v[8:11], v4, s[8:11], s32 offen"); g("s_lshl_b32 s30, s4, 12"); g(f"s_add_u32 s30, s30, {WS_WO}")
    g("s_waitcnt vmcnt(0)"); g("buffer_store_dwordx4 v[8:11], v5, s[24:27], s30 offen")
    g.lab("K0_done"); g("s_endpgm")
    return g.o

def k1():
    g = G()
    A = 16; BF = 192; T = 216; PK = 224; VV = 232; KVA = 240
    SLAB = 28672; RED = 2*SLAB
    g("s_cmp_ge_u32 s2, 256"); g("s_cbranch_scc1 K1_done")
    g("s_load_dwordx2 s[12:13], s[0:1], 8")
    g("s_load_dwordx2 s[16:17], s[0:1], 32"); g("s_load_dwordx2 s[20:21], s[0:1], 40")
    g("s_load_dwordx2 s[24:25], s[0:1], 72")
    consts(g)
    g("s_bfe_u32 s4, s2, 0x30004"); g("s_and_b32 s5, s2, 15")
    g("v_and_b32 v1, 63, v0"); g("v_lshrrev_b32 v2, 6, v0")
    g.nop(); g("v_readfirstlane_b32 s6, v2")
    g("s_waitcnt lgkmcnt(0)")
    srd(g, 12, 1, 448*2688); srd(g, 16, 4, 448*3584); srd(g, 20, 5, 448*3584); srd(g, 24, 9, 0x4000000)
    g("s_lshl_b32 s7, s4, 8"); g("s_lshl_b32 s30, s6, 5"); g("s_add_u32 s7, s7, s30")
    g("v_and_b32 v3, 31, v1"); g("v_lshrrev_b32 v4, 5, v1")
    g("v_lshlrev_b32 v5, 4, v1")
    g("v_lshrrev_b32 v6, 5, v1"); g("v_lshlrev_b32 v6, 9, v6")
    g("v_bfe_u32 v7, v1, 2, 2"); g("v_lshl_add_u32 v6, v7, 6, v6")
    g("v_bfe_u32 v7, v1, 4, 1"); g("v_lshl_add_u32 v6, v7, 5, v6")
    g("v_and_b32 v7, 3, v1"); g("v_lshl_add_u32 v6, v7, 3, v6")
    g("v_lshrrev_b32 v7, 4, v1"); g("v_lshlrev_b32 v7, 2, v7"); g("v_bfe_u32 v8, v1, 2, 2"); g("v_add_u32 v7, v7, v8")
    g("s_movk_i32 s30, 3584"); g("v_mul_lo_u32 v7, v7, s30"); g("v_and_b32 v8, 3, v1"); g("v_lshl_add_u32 v7, v8, 4, v7")
    g("v_add_u32 v8, s7, v3")
    g("s_lshr_b32 s30, s7, 5"); g("s_lshl_b32 s31, s30, 15"); g("s_lshl_b32 s33, s5, 11"); g("s_add_u32 s31, s31, s33"); g("v_add_u32 v9, s31, v5")
    g(f"s_mul_i32 s31, s30, {112*1024}"); g(f"s_mul_i32 s33, s5, {7*1024}"); g("s_add_u32 s31, s31, s33"); g(f"s_add_u32 s31, s31, {WS_H}"); g("v_add_u32 v15, s31, v5")
    g("s_mul_i32 s35, s5, 224")
    g("s_cmp_ge_u32 s2, 128"); g("s_cbranch_scc1 K1_typeB")
    accs = {0:128, 1:160, 2:128, 3:160, 4:176, 5:128, 6:144, 7:160, 8:176, 9:128, 10:144}
    def path(units):
        state = {"out": []}
        def load_a():
            g("s_lshr_b32 s30, s7, 5"); g("s_mul_i32 s30, s30, 28672"); g(f"s_add_u32 s30, s30, {WS_XN}")
            for k4 in range(7):
                for q in range(4):
                    ks = 4*k4+q
                    g(f"buffer_load_dwordx4 v[{A+4*ks}:{A+4*ks+3}], v5, s[24:27], s30 offen offset:{q*1024}")
                    state["out"].append(("a", ks, 1))
                g("s_add_u32 s30, s30, 4096")
        pos = {u: i for i, u in enumerate(units)}
        def issue_slab(u):
            base = (WS_WQ + u*SLAB) if u < 3 else (WS_W13 + (u-3)*SLAB)
            g(f"s_mul_i32 s39, s5, {(3 if u < 3 else 8)*SLAB}"); g(f"s_add_u32 s39, s39, {base}")
            for q in range(4):
                if q < 3: g(f"s_add_u32 s38, s6, {8*q}")
                else: g("s_and_b32 s38, s6, 3"); g("s_add_u32 s38, s38, 24")
                g(f"s_lshl_b32 s38, s38, 10"); g(f"s_add_u32 s30, s38, {(pos[u]%2)*SLAB}"); g("s_mov_b32 m0, s30")
                g("s_add_u32 s30, s38, s39")
                g(f"buffer_load_dwordx4 v5, s[24:27], s30 offen lds")
            state["out"].append(("slab", u, 4))
        def wait_for(kind, u):
            n = 0; found = False
            for it in state["out"]:
                if found: n += it[2]
                if it[0] == kind and it[1] == u: found = True
            if found: g(f"s_waitcnt vmcnt({n})")
        issue_slab(units[0]); load_a()
        def epilogue(u):
            e = G()
            if u == 0:
                phi_pack(e, accs[0], PK, T)
                e(f"buffer_store_dwordx4 v[{PK}:{PK+3}], v9, s[24:27], 0 offen")
                e(f"buffer_store_dwordx4 v[{PK+4}:{PK+7}], v9, s[24:27], 0 offen offset:1024"); e.nop(1)
            elif u == 1:
                phi_pack(e, accs[1], PK, T)
                e("v_cmp_gt_u32 vcc, 28, v3"); e.nop(1)
                for i in range(8): e(f"v_cndmask_b32 v{PK+i}, 0, v{PK+i}, vcc")
            elif u == 2:
                ac = accs[2]
                for i in range(8): e(f"v_cvt_pk_bf16_f32 v{VV+i}, v{ac+2*i}, v{ac+2*i+1}")
                e("v_cmp_eq_u32 vcc, 28, v3"); e(f"v_mov_b32 v{T}, 0x3f803f80"); e.nop(1)
                for i in range(8): e(f"v_cndmask_b32 v{VV+i}, v{VV+i}, v{T}, vcc")
                for i in range(16): e(f"v_mov_b32 v{KVA+i}, 0")
                e.nop(1)
                e(f"v_mfma_f32_32x32x16_bf16 v[{KVA}:{KVA+15}], v[{PK}:{PK+3}], v[{VV}:{VV+3}], v[{KVA}:{KVA+15}]")
                e(f"v_mfma_f32_32x32x16_bf16 v[{KVA}:{KVA+15}], v[{PK+4}:{PK+7}], v[{VV+4}:{VV+7}], v[{KVA}:{KVA+15}]")
                e.nop(15); e.nop(3)
                e("v_lshlrev_b32 v10, 4, v1"); e("s_lshl_b32 s36, s6, 12"); e(f"s_add_u32 s36, s36, {RED}"); e("v_add_u32 v10, s36, v10")
                for q in range(4): e(f"ds_write_b128 v10, v[{KVA+4*q}:{KVA+4*q+3}] offset:{q*1024}")
                e("s_waitcnt lgkmcnt(0)"); e("s_barrier")
                e("v_lshlrev_b32 v10, 4, v1"); e("s_lshr_b32 s36, s6, 1"); e("s_lshl_b32 s36, s36, 10"); e("s_and_b32 s37, s6, 1"); e("s_lshl_b32 s37, s37, 3")
                e("s_add_u32 s36, s36, s37"); e(f"s_add_u32 s36, s36, {RED}"); e("v_add_u32 v10, s36, v10")
                for w in range(8): e(f"ds_read_b64 v[{KVA+2*w}:{KVA+2*w+1}], v10 offset:{w*4096}")
                e("s_waitcnt lgkmcnt(0)")
                for w in range(1, 8):
                    for i in range(2): e(f"v_add_f32 v{KVA+i}, v{KVA+i}, v{KVA+2*w+i}")
                e("v_lshlrev_b32 v10, 6, v1"); e("s_lshl_b32 s36, s4, 16"); e("s_lshl_b32 s37, s5, 12"); e("s_add_u32 s36, s36, s37")
                e("s_lshl_b32 s37, s6, 3"); e("s_add_u32 s36, s36, s37"); e(f"s_add_u32 s36, s36, {WS_KVP}")
                e(f"buffer_store_dwordx2 v[{KVA}:{KVA+1}], v10, s[24:27], s36 offen sc0 sc1"); e.nop(1)
            else:
                p = (u-3)//2; G0, G1 = accs[u-1], accs[u]
                for i in range(0, 16, 2):
                    a, b = G0+i, G0+i+1; c, d = G1+i, G1+i+1
                    rnd2(e, a, b, T); rnd2(e, c, d, T); silu_rnd(e, a, b, T)
                    e(f"v_mul_f32 v{a}, v{a}, v{c}"); e(f"v_mul_f32 v{b}, v{b}, v{d}")
                    e(f"v_cvt_pk_bf16_f32 v{PK+i//2}, v{a}, v{b}")
                e(f"s_movk_i32 s39, {p*2048}"); e(f"buffer_store_dwordx4 v[{PK}:{PK+3}], v15, s[24:27], s39 offen")
                if p < 3: e(f"buffer_store_dwordx4 v[{PK+4}:{PK+7}], v15, s[24:27], s39 offen offset:1024")
                e.nop(1)
            return e.o
        D = 4; NB = 6
        pend = []
        for idx, u in enumerate(units):
            wait_for("slab", u)
            g("s_waitcnt lgkmcnt(0)"); g("s_barrier")
            nxt = units[idx+1] if idx+1 < len(units) else None
            if nxt is not None: issue_slab(nxt)
            acc = accs[u]
            for i in range(16): g(f"v_mov_b32 v{acc+i}, 0")
            g(f"v_add_u32 v2, {(idx%2)*SLAB}, v6")
            def rd(ks):
                b = BF + 4*(ks % NB)
                g(f"ds_read_b64_tr_b16 v[{b}:{b+1}], v2 offset:{ks*1024}")
                g(f"ds_read_b64_tr_b16 v[{b+2}:{b+3}], v2 offset:{ks*1024+256}")
            for ks in range(D): rd(ks)
            nslots = 27 if u < 3 or (u-3)&1 else 55
            per = -(-len(pend) // nslots) if pend else 0
            def emit(ls):
                for l in ls:
                    g.o.append(l)
                    if "buffer_store" in l: state["out"].append(("st", u, 1))
            for ks in range(28):
                if ks + D < 28: rd(ks+D)
                if idx == 0: wait_for("a", ks)
                g(f"s_waitcnt lgkmcnt({2*min(D, 27-ks)})")
                b = BF + 4*(ks % NB); a = A + 4*ks
                if u == 0 or u >= 3:
                    g(f"v_mfma_f32_32x32x16_bf16 v[{acc}:{acc+15}], v[{b}:{b+3}], v[{a}:{a+3}], v[{acc}:{acc+15}]")
                else:
                    g(f"v_mfma_f32_32x32x16_bf16 v[{acc}:{acc+15}], v[{a}:{a+3}], v[{b}:{b+3}], v[{acc}:{acc+15}]")
                if ks >= 1:
                    chunk, pend = pend[:per], pend[per:]; emit(chunk)
            if u < 3 or (u-3)&1:
                emit(pend); pend = epilogue(u)
        g.nop(15); g.nop(3)
        g.o += pend
    path([0, 1, 2, 3, 4])
    g("s_waitcnt vmcnt(0)"); g("s_barrier")
    g("s_cmp_lg_u32 s6, 0"); g("s_cbranch_scc1 K1_done")
    g("s_load_dwordx2 s[40:41], s[0:1], 64"); g("s_waitcnt lgkmcnt(0)")
    g("s_lshl_b32 s30, s5, 2"); g("v_mov_b32 v10, s30"); g("v_mov_b32 v11, 1")
    g("s_mov_b64 s[42:43], exec"); g("s_mov_b64 exec, 1")
    g("global_atomic_add v12, v10, v11, s[40:41] sc0 sc1")
    g("s_waitcnt vmcnt(0)"); g("s_mov_b64 exec, s[42:43]"); g.nop(1)
    g("v_readfirstlane_b32 s30, v12"); g.nop(3)
    g("s_cmp_lg_u32 s30, 7"); g("s_cbranch_scc1 K1_done")
    g("v_lshlrev_b32 v3, 6, v1")
    for rb in range(8):
        g("s_lshl_b32 s30, s5, 12"); g(f"s_add_u32 s30, s30, {WS_KVP + rb*65536}")
        for q in range(4): g(f"buffer_load_dwordx4 v[{128+16*rb+4*q}:{131+16*rb+4*q}], v3, s[24:27], s30 offen offset:{q*16} sc0 sc1")
    g("s_waitcnt vmcnt(0)")
    for rb in range(1, 8):
        for i in range(16): g(f"v_add_f32 v{128+i}, v{128+i}, v{128+16*rb+i}")
    for i in range(8): g(f"v_cvt_pk_bf16_f32 v{48+i}, v{128+2*i}, v{129+2*i}")
    g("v_lshlrev_b32 v3, 5, v1"); g("s_lshl_b32 s30, s5, 11"); g(f"s_add_u32 s30, s30, {WS_KV}")
    g("buffer_store_dwordx4 v[48:51], v3, s[24:27], s30 offen"); g("buffer_store_dwordx4 v[52:55], v3, s[24:27], s30 offen offset:16")
    g("s_branch K1_done")
    g.lab("K1_typeB"); path([5, 6, 7, 8, 9, 10])
    g.lab("K1_done"); g("s_endpgm")
    return g.o

def k2():
    g = G()
    ACC = 64; HF = 128; BF = 192; T = 224
    g("s_cmp_ge_u32 s2, 224"); g("s_cbranch_scc1 K2_done")
    g("s_load_dwordx2 s[12:13], s[0:1], 0"); g("s_load_dwordx2 s[16:17], s[0:1], 56"); g("s_load_dwordx2 s[24:25], s[0:1], 72")
    consts(g)
    g("v_and_b32 v1, 63, v0"); g("v_lshrrev_b32 v2, 6, v0"); g.nop(); g("v_readfirstlane_b32 s6, v2")
    g("s_waitcnt lgkmcnt(0)")
    srd(g, 12, 0, 2048*896); srd(g, 16, 7, 2048*896); srd(g, 24, 9, 0x4000000)
    g.lab("K2_gemm")
    g("s_and_b32 s4, s2, 31"); g("s_lshr_b32 s5, s2, 5")
    g("v_and_b32 v3, 31, v1"); g("v_lshrrev_b32 v4, 5, v1")
    g("s_lshl_b32 s7, s4, 6"); g("v_lshlrev_b32 v5, 4, v1"); g(f"s_mul_i32 s30, s4, {2*112*1024}")
    g(f"s_mul_i32 s33, s6, {14*1024}"); g("s_add_u32 s30, s30, s33"); g(f"s_add_u32 s30, s30, {WS_H}"); g("v_add_u32 v5, s30, v5")
    g(f"v_add_u32 v8, {112*1024}, v5")
    g("v_lshrrev_b32 v6, 5, v1"); g("v_lshlrev_b32 v6, 9, v6")
    g("v_bfe_u32 v7, v1, 2, 2"); g("v_lshl_add_u32 v6, v7, 6, v6")
    g("v_bfe_u32 v7, v1, 4, 1"); g("v_lshl_add_u32 v6, v7, 5, v6")
    g("v_and_b32 v7, 3, v1"); g("v_lshl_add_u32 v6, v7, 3, v6"); g("s_lshl_b32 s31, s6, 14"); g("v_add_u32 v6, s31, v6")
    g("v_bfe_u32 v7, v1, 4, 1"); g("v_lshlrev_b32 v7, 3, v7"); g("v_lshrrev_b32 v9, 5, v1"); g("v_lshl_add_u32 v7, v9, 2, v7")
    g("v_bfe_u32 v9, v1, 2, 2"); g("v_add_u32 v7, v7, v9"); g("s_movk_i32 s30, 896"); g("v_mul_lo_u32 v7, v7, s30")
    g("v_and_b32 v9, 3, v1"); g("v_lshl_add_u32 v7, v9, 4, v7")
    g("v_lshlrev_b32 v7, 4, v1")
    g("s_mul_i32 s32, s6, {}".format(14*2048)); g("s_mul_i32 s30, s5, {}".format(224*1024)); g("s_add_u32 s32, s32, s30"); g(f"s_add_u32 s32, s32, {WS_W2}")
    for i in range(64): g(f"v_mov_b32 v{ACC+i}, 0")
    g("v_lshlrev_b32 v9, 4, v1"); g("v_lshlrev_b32 v12, 5, v1")
    for t in range(2):
        for hh in range(2):
            r = 16 + 8*(2*t+hh)
            g("s_lshl_b32 s30, s4, 1"); g(f"s_add_u32 s30, s30, {t}"); g("s_lshl_b32 s30, s30, 15"); g("s_lshl_b32 s33, s6, 12"); g("s_add_u32 s30, s30, s33"); g(f"s_add_u32 s30, s30, {hh*2048}")
            g(f"buffer_load_dwordx4 v[{r}:{r+3}], v9, s[24:27], s30 offen"); g(f"buffer_load_dwordx4 v[{r+4}:{r+7}], v9, s[24:27], s30 offen offset:1024")
    for hh in range(2):
        r = 48 + 8*hh
        g("s_lshl_b32 s30, s6, 12"); g(f"s_add_u32 s30, s30, {WS_KV + hh*2048}")
        g(f"buffer_load_dwordx4 v[{r}:{r+3}], v12, s[24:27], s30 offen"); g(f"buffer_load_dwordx4 v[{r+4}:{r+7}], v12, s[24:27], s30 offen offset:16")
    P = 7
    def issue(ks):
        for un in range(2):
            g(f"s_add_u32 s30, s31, {(ks%8)*2048 + un*1024}"); g("s_mov_b32 m0, s30")
            g(f"s_add_u32 s30, s32, {ks*2048 + un*1024}")
            g(f"buffer_load_dwordx4 v7, s[24:27], s30 offen lds")
        h = HF + 8*(ks % 8)
        g(f"s_movk_i32 s30, {ks*1024}")
        g(f"buffer_load_dwordx4 v[{h}:{h+3}], v5, s[24:27], s30 offen")
        g(f"buffer_load_dwordx4 v[{h+4}:{h+7}], v8, s[24:27], s30 offen")
    for ks in range(P): issue(ks)
    for ks in range(14):
        if ks + P < 14: issue(ks+P)
        g(f"s_waitcnt vmcnt({4*min(P, 13-ks)})")
        o = (ks%8)*2048
        for un in range(2):
            g(f"ds_read_b64_tr_b16 v[{BF+4*un}:{BF+4*un+1}], v6 offset:{o+un*1024}")
            g(f"ds_read_b64_tr_b16 v[{BF+4*un+2}:{BF+4*un+3}], v6 offset:{o+un*1024+256}")
        g("s_waitcnt lgkmcnt(0)")
        h = HF + 8*(ks % 8)
        for un in range(2):
            for t in range(2):
                a = ACC + 16*(2*un+t)
                g(f"v_mfma_f32_32x32x16_bf16 v[{a}:{a+15}], v[{BF+4*un}:{BF+4*un+3}], v[{h+4*t}:{h+4*t+3}], v[{a}:{a+15}]")
    g.nop(15); g.nop(3)
    g("s_barrier")
    g("v_lshlrev_b32 v10, 4, v1"); g("s_lshl_b32 s30, s6, 14"); g("v_add_u32 v10, s30, v10")
    for q in range(16): g(f"ds_write_b128 v10, v[{ACC+4*q}:{ACC+4*q+3}] offset:{q*1024}")
    g("s_waitcnt lgkmcnt(0)"); g("s_barrier")
    g("v_lshlrev_b32 v10, 4, v1"); g("s_lshr_b32 s30, s6, 1"); g("s_lshl_b32 s30, s30, 12"); g("s_and_b32 s33, s6, 1"); g("s_lshl_b32 s33, s33, 11")
    g("s_add_u32 s30, s30, s33"); g("v_add_u32 v10, s30, v10"); g("v_add_u32 v11, 0x10000, v10")
    for w in range(8):
        for q in range(2): g(f"ds_read_b128 v[{ACC+8*w+4*q}:{ACC+8*w+4*q+3}], v{10 if w < 4 else 11} offset:{(w%4)*16384+q*1024}")
    g("s_waitcnt lgkmcnt(0)")
    for w in range(1, 8):
        for i in range(8): g(f"v_add_f32 v{ACC+i}, v{ACC+i}, v{ACC+8*w+i}")
    for i in range(0, 8, 2):
        rnd2(g, ACC+i, ACC+i+1, T); silu_rnd(g, ACC+i, ACC+i+1, T)
        g(f"v_cvt_pk_bf16_f32 v{BF+i//2}, v{ACC+i}, v{ACC+i+1}")
    for i in range(4): g(f"v_mov_b32 v{200+i}, v{BF+i}")
    g("s_bfe_u32 s30, s6, 0x10001"); g("s_lshl_b32 s30, s30, 5"); g("s_add_u32 s30, s30, s7"); g("v_add_u32 v13, s30, v3")
    g("s_movk_i32 s30, 896"); g("v_mul_lo_u32 v13, v13, s30"); g("v_lshl_add_u32 v13, v4, 3, v13")
    g("s_lshr_b32 s34, s6, 2"); g("s_lshl_b32 s34, s34, 6"); g("s_lshl_b32 s33, s5, 7"); g("s_add_u32 s34, s34, s33"); g("s_and_b32 s33, s6, 1"); g("s_lshl_b32 s33, s33, 5"); g("s_add_u32 s34, s34, s33")
    g("buffer_load_dwordx2 v[204:205], v13, s[12:15], s34 offen"); g("buffer_load_dwordx2 v[206:207], v13, s[12:15], s34 offen offset:16")
    g("s_barrier")
    for un in range(2):
        for k4 in range(4):
            g(f"s_add_u32 s30, s31, {(un*4+k4)*1024}"); g("s_mov_b32 m0, s30")
            g("s_lshl_b32 s30, s5, 16"); g("s_lshl_b32 s33, s6, 12"); g("s_add_u32 s30, s30, s33"); g(f"s_add_u32 s30, s30, {WS_WO + un*32768 + k4*1024}")
            g("buffer_load_dwordx4 v7, s[24:27], s30 offen lds")
    g("v_add_u32 v14, 32, v3"); g("v_lshlrev_b32 v14, 2, v14")
    OA = 128
    for i in range(64): g(f"v_mov_b32 v{OA+i}, 0")
    g.nop(1)
    for t in range(2):
        for hh in range(2):
            a = OA + 16*(2*t+hh); pq = 16 + 8*(2*t+hh); kv = 48 + 8*hh
            g(f"v_mfma_f32_32x32x16_bf16 v[{a}:{a+15}], v[{kv}:{kv+3}], v[{pq}:{pq+3}], v[{a}:{a+15}]")
            g(f"v_mfma_f32_32x32x16_bf16 v[{a}:{a+15}], v[{kv+4}:{kv+7}], v[{pq+4}:{pq+7}], v[{a}:{a+15}]")
    g.nop(15); g.nop(3)
    for th in range(4):
        a = OA + 16*th; of = 16 + 8*th
        g(f"ds_bpermute_b32 v{T}, v14, v{a+12}"); g("s_waitcnt lgkmcnt(0)")
        rnd2(g, T, T+1, T+2); g(f"v_add_f32 v{T}, s91, v{T}"); rnd2(g, T, T+1, T+2)
        g(f"v_rcp_f32 v{T}, v{T}"); g.nop()
        for i in range(0, 16, 2):
            rnd2(g, a+i, a+i+1, T+2)
            g(f"v_mul_f32 v{a+i}, v{a+i}, v{T}"); g(f"v_mul_f32 v{a+i+1}, v{a+i+1}, v{T}")
            g(f"v_cvt_pk_bf16_f32 v{of+i//2}, v{a+i}, v{a+i+1}")
        g("v_cmp_eq_u32 vcc, 0, v4"); g.nop(1)
        g(f"v_cndmask_b32 v{of+6}, 0, v{of+6}, vcc"); g(f"v_cndmask_b32 v{of+7}, 0, v{of+7}, vcc")
    for i in range(64): g(f"v_mov_b32 v{ACC+i}, 0")
    g("s_waitcnt vmcnt(0)")
    for k4 in range(4):
        for un in range(2):
            o = (un*4+k4)*1024
            g(f"ds_read_b64_tr_b16 v[{BF}:{BF+1}], v6 offset:{o}"); g(f"ds_read_b64_tr_b16 v[{BF+2}:{BF+3}], v6 offset:{o+256}")
            g("s_waitcnt lgkmcnt(0)")
            for t in range(2):
                a = ACC + 16*(2*un+t); of = 16 + 8*(2*t + k4//2) + 4*(k4%2)
                g(f"v_mfma_f32_32x32x16_bf16 v[{a}:{a+15}], v[{BF}:{BF+3}], v[{of}:{of+3}], v[{a}:{a+15}]")
            g.nop(7)
    g.nop(15); g.nop(3)
    g("s_barrier")
    g("v_lshlrev_b32 v10, 4, v1"); g("s_lshl_b32 s30, s6, 14"); g("v_add_u32 v10, s30, v10")
    for q in range(16): g(f"ds_write_b128 v10, v[{ACC+4*q}:{ACC+4*q+3}] offset:{q*1024}")
    g("s_waitcnt lgkmcnt(0)"); g("s_barrier")
    g("v_lshlrev_b32 v10, 4, v1"); g("s_lshr_b32 s30, s6, 1"); g("s_lshl_b32 s30, s30, 12"); g("s_and_b32 s33, s6, 1"); g("s_lshl_b32 s33, s33, 11")
    g("s_add_u32 s30, s30, s33"); g("v_add_u32 v10, s30, v10"); g("v_add_u32 v11, 0x10000, v10")
    for w in range(8):
        for q in range(2): g(f"ds_read_b128 v[{ACC+8*w+4*q}:{ACC+8*w+4*q+3}], v{10 if w < 4 else 11} offset:{(w%4)*16384+q*1024}")
    g("s_waitcnt lgkmcnt(0)")
    for w in range(1, 8):
        for i in range(8): g(f"v_add_f32 v{ACC+i}, v{ACC+i}, v{ACC+8*w+i}")
    for i in range(0, 8, 2):
        a, b = ACC+i, ACC+i+1
        rnd2(g, a, b, T)
        g(f"v_lshlrev_b32 v{T}, 16, v{200+i//2}"); g(f"v_and_b32 v{T+1}, 0xffff0000, v{200+i//2}")
        g(f"v_mul_f32 v{a}, v{a}, v{T}"); g(f"v_mul_f32 v{b}, v{b}, v{T+1}")
        rnd2(g, a, b, T)
        g(f"v_lshlrev_b32 v{T}, 16, v{204+i//2}"); g(f"v_and_b32 v{T+1}, 0xffff0000, v{204+i//2}")
        g(f"v_add_f32 v{a}, v{a}, v{T}"); g(f"v_add_f32 v{b}, v{b}, v{T+1}")
        g(f"v_cvt_pk_bf16_f32 v{204+i//2}, v{a}, v{b}")
    g("buffer_store_dwordx2 v[204:205], v13, s[16:19], s34 offen"); g("buffer_store_dwordx2 v[206:207], v13, s[16:19], s34 offen offset:16")
    g.lab("K2_done"); g("s_endpgm")
    return g.o

def k3():
    g = G()
    ACC = 64; PQF = 96; KVF = 112; BF = 128; OF = 144; T = 160; GX = 176
    g("s_cmp_ge_u32 s2, 128"); g("s_cbranch_scc1 K3_done")
    g("s_load_dwordx2 s[8:9], s[0:1], 16"); g("s_load_dwordx2 s[12:13], s[0:1], 0"); g("s_load_dwordx2 s[16:17], s[0:1], 56")
    g("s_load_dwordx2 s[24:25], s[0:1], 72")
    consts(g)
    g("v_and_b32 v1, 63, v0"); g("v_lshrrev_b32 v2, 6, v0"); g.nop(); g("v_readfirstlane_b32 s6, v2")
    g("s_waitcnt lgkmcnt(0)")
    srd(g, 8, 2, 448*896); srd(g, 12, 0, 2048*896); srd(g, 16, 7, 2048*896); srd(g, 24, 9, 0x4000000)
    g("s_and_b32 s4, s2, 63"); g("s_lshr_b32 s5, s2, 6"); g("s_lshl_b32 s7, s4, 5")
    g("v_and_b32 v3, 31, v1"); g("v_lshrrev_b32 v4, 5, v1")
    g("v_lshlrev_b32 v5, 4, v1"); g("s_lshl_b32 s30, s4, 15"); g("v_add_u32 v5, s30, v5")
    g("v_lshlrev_b32 v8, 5, v1")
    g("v_add_u32 v14, 32, v3"); g("v_lshlrev_b32 v14, 2, v14")
    g("v_lshlrev_b32 v10, 4, v1"); g(f"v_add_u32 v10, {8*16384}, v10")
    for hh in range(2):
        g("s_lshl_b32 s30, s6, 12"); g(f"s_add_u32 s30, s30, {hh*2048}")
        g(f"buffer_load_dwordx4 v[{PQF+8*hh}:{PQF+8*hh+3}], v5, s[24:27], s30 offen"); g(f"buffer_load_dwordx4 v[{PQF+8*hh+4}:{PQF+8*hh+7}], v5, s[24:27], s30 offen offset:1024")
        g("s_lshl_b32 s30, s6, 12"); g(f"s_add_u32 s30, s30, {WS_KV + hh*2048}")
        g(f"buffer_load_dwordx4 v[{KVF+8*hh}:{KVF+8*hh+3}], v8, s[24:27], s30 offen"); g(f"buffer_load_dwordx4 v[{KVF+8*hh+4}:{KVF+8*hh+7}], v8, s[24:27], s30 offen offset:16")
    g("v_lshrrev_b32 v6, 5, v1"); g("v_lshlrev_b32 v6, 9, v6")
    g("v_bfe_u32 v7, v1, 2, 2"); g("v_lshl_add_u32 v6, v7, 6, v6")
    g("v_bfe_u32 v7, v1, 4, 1"); g("v_lshl_add_u32 v6, v7, 5, v6")
    g("v_and_b32 v7, 3, v1"); g("v_lshl_add_u32 v6, v7, 3, v6"); g("s_lshl_b32 s31, s6, 14"); g("v_add_u32 v6, s31, v6")
    g("v_bfe_u32 v7, v1, 4, 1"); g("v_lshlrev_b32 v7, 3, v7"); g("v_lshrrev_b32 v9, 5, v1"); g("v_lshl_add_u32 v7, v9, 2, v7")
    g("v_bfe_u32 v9, v1, 2, 2"); g("v_add_u32 v7, v7, v9")
    g("v_add_u32 v12, 16, v7"); g("v_min_u32 v12, 27, v12")
    g("s_movk_i32 s30, 896"); g("v_mul_lo_u32 v7, v7, s30"); g("v_mul_lo_u32 v12, v12, s30")
    g("v_and_b32 v9, 3, v1"); g("v_lshl_add_u32 v7, v9, 4, v7"); g("v_lshl_add_u32 v12, v9, 4, v12")
    g("v_add_u32 v13, s7, v3"); g("s_movk_i32 s30, 896"); g("v_mul_lo_u32 v13, v13, s30")
    g("s_min_u32 s34, s6, 6")
    g("s_mul_i32 s33, s5, 7"); g("s_add_u32 s33, s33, s34"); g("s_lshl_b32 s32, s33, 6")
    g(f"s_mul_i32 s30, s4, {28*1024}"); g("s_lshl_b32 s35, s33, 11"); g("s_add_u32 s30, s30, s35"); g(f"s_add_u32 s30, s30, {WS_G}"); g("v_lshlrev_b32 v11, 4, v1")
    g(f"buffer_load_dwordx4 v[{GX}:{GX+3}], v11, s[24:27], s30 offen"); g(f"buffer_load_dwordx4 v[{GX+4}:{GX+7}], v11, s[24:27], s30 offen offset:1024")
    g("v_lshl_add_u32 v11, v4, 3, v13")
    for q in range(4): g(f"buffer_load_dwordx2 v[{GX+8+2*q}:{GX+9+2*q}], v11, s[12:15], s32 offen offset:{q*16}")
    P = 15
    g("v_lshlrev_b32 v7, 4, v1"); g("s_lshl_b32 s36, s33, 15"); g(f"s_add_u32 s36, s36, {WS_WO}")
    def issue(ks):
        g(f"s_add_u32 s30, s31, {(ks%16)*1024}"); g("s_mov_b32 m0, s30")
        g(f"s_add_u32 s30, s36, {ks*1024}")
        g(f"buffer_load_dwordx4 v7, s[24:27], s30 offen lds")
    for ks in range(P): issue(ks)
    g(f"s_waitcnt vmcnt({6+P})")
    for hh in range(2):
        a = ACC + 16*hh
        for i in range(16): g(f"v_mov_b32 v{a+i}, 0")
        g.nop(1)
        g(f"v_mfma_f32_32x32x16_bf16 v[{a}:{a+15}], v[{KVF+8*hh}:{KVF+8*hh+3}], v[{PQF+8*hh}:{PQF+8*hh+3}], v[{a}:{a+15}]")
        g(f"v_mfma_f32_32x32x16_bf16 v[{a}:{a+15}], v[{KVF+8*hh+4}:{KVF+8*hh+7}], v[{PQF+8*hh+4}:{PQF+8*hh+7}], v[{a}:{a+15}]")
    g.nop(15); g.nop(3)
    for hh in range(2):
        a = ACC + 16*hh
        g(f"ds_bpermute_b32 v{T}, v14, v{a+12}"); g("s_waitcnt lgkmcnt(0)")
        rnd2(g, T, T+1, T+2); g(f"v_add_f32 v{T}, s91, v{T}"); rnd2(g, T, T+1, T+2)
        g(f"v_rcp_f32 v{T}, v{T}"); g.nop()
        for i in range(0, 16, 2):
            rnd2(g, a+i, a+i+1, T+2)
            g(f"v_mul_f32 v{a+i}, v{a+i}, v{T}"); g(f"v_mul_f32 v{a+i+1}, v{a+i+1}, v{T}")
            g(f"v_cvt_pk_bf16_f32 v{OF+i//2}, v{a+i}, v{a+i+1}")
        g("v_cmp_eq_u32 vcc, 0, v4"); g.nop(1)
        g(f"v_cndmask_b32 v{OF+6}, 0, v{OF+6}, vcc"); g(f"v_cndmask_b32 v{OF+7}, 0, v{OF+7}, vcc")
        g("s_lshl_b32 s30, s6, 12"); g(f"v_add_u32 v15, s30, v10")
        g(f"ds_write_b128 v15, v[{OF}:{OF+3}] offset:{hh*2048}"); g(f"ds_write_b128 v15, v[{OF+4}:{OF+7}] offset:{hh*2048+1024}")
    g("s_waitcnt lgkmcnt(0)"); g("s_barrier")
    g("s_cmp_eq_u32 s6, 7"); g("s_cbranch_scc1 K3_done")
    for i in range(16): g(f"v_mov_b32 v{ACC+i}, 0")
    for ks in range(32):
        if ks + P < 32: issue(ks+P)
        g(f"s_waitcnt vmcnt({min(P, 31-ks)})")
        o = (ks%16)*1024; b = BF + 8*(ks%2)
        g(f"ds_read_b64_tr_b16 v[{b}:{b+1}], v6 offset:{o}"); g(f"ds_read_b64_tr_b16 v[{b+2}:{b+3}], v6 offset:{o+256}")
        g(f"ds_read_b128 v[{b+4}:{b+7}], v10 offset:{ks*1024}")
        g("s_waitcnt lgkmcnt(0)")
        g(f"v_mfma_f32_32x32x16_bf16 v[{ACC}:{ACC+15}], v[{b}:{b+3}], v[{b+4}:{b+7}], v[{ACC}:{ACC+15}]")
    g.nop(15); g.nop(3)
    for i in range(0, 16, 2):
        a, b = ACC+i, ACC+i+1
        rnd2(g, a, b, T)
        g(f"v_lshlrev_b32 v{T}, 16, v{GX+i//2}"); g(f"v_and_b32 v{T+1}, 0xffff0000, v{GX+i//2}")
        g(f"v_mul_f32 v{a}, v{a}, v{T}"); g(f"v_mul_f32 v{b}, v{b}, v{T+1}")
        rnd2(g, a, b, T)
        g(f"v_lshlrev_b32 v{T}, 16, v{GX+8+i//2}"); g(f"v_and_b32 v{T+1}, 0xffff0000, v{GX+8+i//2}")
        g(f"v_add_f32 v{a}, v{a}, v{T}"); g(f"v_add_f32 v{b}, v{b}, v{T+1}")
        g(f"v_cvt_pk_bf16_f32 v{GX+8+i//2}, v{a}, v{b}")
    for q in range(4): g(f"buffer_store_dwordx2 v[{GX+8+2*q}:{GX+9+2*q}], v11, s[16:19], s32 offen offset:{q*16}")
    g.lab("K3_done"); g("s_endpgm")
    return g.o

hdr = open(f"cdna_kernels/{NAME}.s.ref").read().split("; Override")[0]
out = hdr
out += "; @launch kernel=k0_kernel grid=(2248,1,1) block=(256,1,1) lds=0\n"
out += "; @launch kernel=k1_kernel grid=(256,1,1) block=(512,1,1) lds=90112\n"
out += "; @launch kernel=k2_kernel grid=(224,1,1) block=(512,1,1) lds=131072\n"
out += '.amdgcn_target "amdgcn-amd-amdhsa--gfx950"\n.text\n'
for nm, f in (("k0_kernel", k0), ("k1_kernel", k1), ("k2_kernel", k2)):
    out += f".globl {nm}\n.p2align 8\n.type {nm},@function\n{nm}:\n" + "\n".join(f()) + "\n"
out += kdesc("k0_kernel", 32) + kdesc("k1_kernel", 256) + kdesc("k2_kernel", 256)
open(f"cdna_kernels/{NAME}.s", "w").write(out)
```

```python
import sys
NAME = "recurrent_scan__linear_attn_block__glu_gated_swiglu__prompt"
WS_PQ = 0x000000; WS_H = 0x200000; WS_KVP = 0xA00000; WS_KV = 0xB00000; WS_G = 0xC00000
L2E = 0x3fb8aa3b
EPS6 = 0x358637bd

class G:
    def __init__(s): s.o = []
    def __call__(s, t): s.o.append("    " + t)
    def lab(s, t): s.o.append(t + ":")
    def nop(s, n=0): s(f"s_nop {n}")

def srd(g, d, slot, nbytes, base_add=0):
    if base_add:
        g(f"s_add_u32 s{d}, s{d}, {base_add}"); g(f"s_addc_u32 s{d+1}, s{d+1}, 0")
    g(f"s_and_b32 s{d+1}, s{d+1}, 0xffff")
    g(f"s_mov_b32 s{d+2}, {nbytes}"); g(f"s_mov_b32 s{d+3}, 0x20000")

def rnd2(g, a, b, t):
    g(f"v_cvt_pk_bf16_f32 v{t}, v{a}, v{b}")
    g(f"v_lshlrev_b32 v{a}, 16, v{t}")
    g(f"v_and_b32 v{b}, 0xffff0000, v{t}")

def phi_pack(g, acc, out, t):
    for i in range(0, 16, 2):
        a, b = acc+i, acc+i+1
        rnd2(g, a, b, t)
        g(f"v_mul_f32 v{t}, s90, v{a}"); g(f"v_mul_f32 v{t+1}, s90, v{b}")
        g(f"v_exp_f32 v{t}, v{t}"); g(f"v_exp_f32 v{t+1}, v{t+1}")
        g(f"v_add_f32 v{t+2}, 1.0, v{a}"); g(f"v_add_f32 v{t+3}, 1.0, v{b}")
        g(f"v_cmp_lt_f32 vcc, 0, v{a}"); g.nop(1)
        g(f"v_cndmask_b32 v{a}, v{t}, v{t+2}, vcc")
        g(f"v_cmp_lt_f32 vcc, 0, v{b}"); g.nop(1)
        g(f"v_cndmask_b32 v{b}, v{t+1}, v{t+3}, vcc")
        rnd2(g, a, b, t)
        g(f"v_add_f32 v{a}, s91, v{a}"); g(f"v_add_f32 v{b}, s91, v{b}")
        g(f"v_cvt_pk_bf16_f32 v{out+i//2}, v{a}, v{b}")

def silu_rnd(g, a, b, t):
    for r, tt in ((a, t), (b, t+1)):
        g(f"v_mul_f32 v{tt}, s92, v{r}")
        g(f"v_exp_f32 v{tt}, v{tt}"); g.nop()
        g(f"v_add_f32 v{tt}, 1.0, v{tt}")
        g(f"v_rcp_f32 v{tt}, v{tt}"); g.nop()
        g(f"v_mul_f32 v{r}, v{r}, v{tt}")
    rnd2(g, a, b, t)

def consts(g):
    g(f"s_mov_b32 s90, {L2E}"); g(f"s_mov_b32 s91, {EPS6}"); g(f"s_mov_b32 s92, {L2E | 0x80000000}")

def kdesc(name, vg, sg=100):
    return f""".section .rodata,"a"
.p2align 6
.amdhsa_kernel {name}
  .amdhsa_next_free_vgpr {vg}
  .amdhsa_next_free_sgpr {sg}
  .amdhsa_accum_offset {vg}
  .amdhsa_group_segment_fixed_size 0
  .amdhsa_kernarg_size 80
  .amdhsa_user_sgpr_count 2
  .amdhsa_user_sgpr_kernarg_segment_ptr 1
  .amdhsa_system_sgpr_workgroup_id_x 1
.end_amdhsa_kernel
"""

WS_XN = 0xE00000
WS_W13 = 0x1000000; WS_WQ = 0x1400000; WS_W2 = 0x1600000; WS_WO = 0x1800000
def k0():
    g = G()
    g("s_cmp_ge_u32 s2, 2248"); g("s_cbranch_scc1 K0_done")
    g("s_cmp_ge_u32 s2, 512"); g("s_cbranch_scc1 K0_rep")
    g("s_load_dwordx2 s[8:9], s[0:1], 0"); g("s_load_dwordx2 s[24:25], s[0:1], 72")
    g("v_and_b32 v1, 63, v0"); g("v_lshrrev_b32 v2, 6, v0"); g.nop(); g("v_readfirstlane_b32 s6, v2")
    g("s_waitcnt lgkmcnt(0)")
    srd(g, 8, 0, 2048*896); srd(g, 24, 9, 0x4000000)
    g("s_lshl_b32 s4, s2, 2"); g("s_add_u32 s4, s4, s6")
    g("s_mul_i32 s5, s4, 896"); g("v_lshlrev_b32 v3, 4, v1")
    g("v_cmp_gt_u32 s[32:33], 56, v1")
    g("v_min_u32 v3, 880, v3")
    g("buffer_load_dwordx4 v[4:7], v3, s[8:11], s5 offen")
    g("s_waitcnt vmcnt(0)")
    for q in range(4): g(f"v_cndmask_b32 v{4+q}, 0, v{4+q}, s[32:33]")
    for q in range(4):
        g(f"v_lshlrev_b32 v{8+2*q}, 16, v{4+q}"); g(f"v_and_b32 v{9+2*q}, 0xffff0000, v{4+q}")
    def wavesum(r):
        for m in (1, 2, 4, 8, 16):
            g(f"ds_swizzle_b32 v20, v{r} offset:{(m<<10)|0x1f}"); g("s_waitcnt lgkmcnt(0)"); g(f"v_add_f32 v{r}, v{r}, v20")
        g(f"ds_bpermute_b32 v20, v21, v{r}"); g("s_waitcnt lgkmcnt(0)"); g(f"v_add_f32 v{r}, v{r}, v20")
    g("v_lshlrev_b32 v21, 2, v1"); g("v_xor_b32 v21, 128, v21")
    g("v_pk_add_f32 v[16:17], v[8:9], v[10:11]"); g("v_pk_add_f32 v[18:19], v[12:13], v[14:15]")
    g("v_pk_add_f32 v[16:17], v[16:17], v[18:19]"); g("v_add_f32 v16, v16, v17")
    wavesum(16)
    g("v_mul_f32 v16, 0x3b124925, v16"); g("v_mov_b32 v17, v16")
    for q in range(4): g(f"v_pk_add_f32 v[{24+2*q}:{25+2*q}], v[{8+2*q}:{9+2*q}], v[16:17] neg_lo:[0,1] neg_hi:[0,1]")
    g("v_pk_mul_f32 v[18:19], v[24:25], v[24:25]")
    for q in range(1, 4): g(f"v_pk_fma_f32 v[18:19], v[{24+2*q}:{25+2*q}], v[{24+2*q}:{25+2*q}], v[18:19]")
    g("v_add_f32 v18, v18, v19"); g("v_cndmask_b32 v18, 0, v18, s[32:33]")
    wavesum(18)
    g("v_mul_f32 v18, 0x3b124925, v18")
    rnd2(g, 18, 16, 22)
    g("v_add_f32 v18, 0x3727c5ac, v18"); rnd2(g, 18, 19, 22)
    g("v_sqrt_f32 v18, v18"); g.nop(); rnd2(g, 18, 19, 22)
    g("v_rcp_f32 v18, v18"); g.nop(); g("v_mov_b32 v19, v18"); g("v_mov_b32 v17, v16")
    for q in range(4):
        g(f"v_pk_add_f32 v[{8+2*q}:{9+2*q}], v[{8+2*q}:{9+2*q}], v[16:17] neg_lo:[0,1] neg_hi:[0,1]")
        g(f"v_cvt_pk_bf16_f32 v{4+q}, v{8+2*q}, v{9+2*q}")
        g(f"v_lshlrev_b32 v{8+2*q}, 16, v{4+q}"); g(f"v_and_b32 v{9+2*q}, 0xffff0000, v{4+q}")
        g(f"v_pk_mul_f32 v[{8+2*q}:{9+2*q}], v[{8+2*q}:{9+2*q}], v[18:19]")
        g(f"v_cvt_pk_bf16_f32 v{4+q}, v{8+2*q}, v{9+2*q}")
    g("v_lshrrev_b32 v3, 1, v1"); g("v_lshlrev_b32 v3, 10, v3"); g("v_and_b32 v2, 1, v1"); g("v_lshl_add_u32 v3, v2, 9, v3")
    g("s_lshr_b32 s30, s4, 5"); g("s_mul_i32 s30, s30, 28672"); g("s_and_b32 s31, s4, 31"); g("s_lshl_b32 s31, s31, 4")
    g("s_add_u32 s30, s30, s31"); g(f"s_add_u32 s30, s30, {WS_XN}")
    g("s_and_saveexec_b64 s[34:35], s[32:33]")
    g("buffer_store_dwordx4 v[4:7], v3, s[24:27], s30 offen")
    g("s_branch K0_done")
    g.lab("K0_rep")
    g("s_load_dwordx2 s[24:25], s[0:1], 72")
    g("v_bfe_u32 v2, v0, 2, 2"); g("v_and_b32 v3, 3, v0")
    g("s_cmp_ge_u32 s2, 1744"); g("s_cbranch_scc1 K0_w2")
    g("s_sub_u32 s4, s2, 512"); g("s_mul_hi_u32 s5, s4, 0x24924925"); g("s_mul_i32 s6, s5, 7"); g("s_sub_u32 s6, s4, s6")
    g("s_lshl_b32 s7, s6, 4"); g("v_lshrrev_b32 v4, 4, v0"); g("v_add_u32 v4, s7, v4"); g("v_lshl_add_u32 v4, v4, 2, v2")
    g("s_mul_i32 s30, s5, 28672"); g("s_lshl_b32 s31, s6, 12"); g("s_add_u32 s30, s30, s31")
    g("v_lshlrev_b32 v5, 4, v0")
    g("s_cmp_ge_u32 s5, 128"); g("s_cbranch_scc1 K0_wq")
    g("s_and_b32 s31, s5, 1"); g("s_lshl_b32 s31, s31, 3"); g("s_add_u32 s31, s31, 32"); g("s_load_dwordx2 s[8:9], s[0:1], s31")
    g("s_waitcnt lgkmcnt(0)"); srd(g, 8, 0, 448*3584); srd(g, 24, 9, 0x4000000)
    g("s_lshr_b32 s32, s5, 3"); g("s_mul_i32 s32, s32, 224"); g("s_bfe_u32 s33, s5, 0x20001"); g("s_lshl_b32 s33, s33, 6"); g("s_add_u32 s32, s32, s33")
    g("s_movk_i32 s31, 3584"); g("v_mul_lo_u32 v4, v4, s31"); g("v_lshl_add_u32 v4, v3, 4, v4")
    g("buffer_load_dwordx4 v[8:11], v4, s[8:11], s32 offen"); g(f"s_add_u32 s30, s30, {WS_W13}")
    g("s_waitcnt vmcnt(0)"); g("buffer_store_dwordx4 v[8:11], v5, s[24:27], s30 offen"); g("s_branch K0_done")
    g.lab("K0_wq")
    g("s_load_dwordx2 s[8:9], s[0:1], 8"); g("s_waitcnt lgkmcnt(0)"); srd(g, 8, 0, 448*2688); srd(g, 24, 9, 0x4000000)
    g("s_sub_u32 s5, s5, 128"); g("s_mul_hi_u32 s32, s5, 0x55555556"); g("s_mul_i32 s33, s32, 3"); g("s_sub_u32 s33, s5, s33")
    g("s_mul_i32 s32, s32, 56"); g("s_mul_i32 s33, s33, 896"); g("s_add_u32 s32, s32, s33")
    g("s_movk_i32 s31, 2688"); g("v_mul_lo_u32 v4, v4, s31"); g("v_lshl_add_u32 v4, v3, 4, v4")
    g("buffer_load_dwordx2 v[8:9], v4, s[8:11], s32 offen"); g("buffer_load_dwordx2 v[10:11], v4, s[8:11], s32 offen offset:8")
    g(f"s_add_u32 s30, s30, {WS_WQ - 128*28672}"); g("v_cmp_eq_u32 vcc, 3, v3")
    g("s_waitcnt vmcnt(0)"); g("v_cndmask_b32 v10, v10, 0, vcc"); g("v_cndmask_b32 v11, v11, 0, vcc")
    g("buffer_store_dwordx4 v[8:11], v5, s[24:27], s30 offen"); g("s_branch K0_done")
    g.lab("K0_w2")
    g("v_bfe_u32 v4, v0, 4, 1"); g("v_lshlrev_b32 v4, 3, v4"); g("v_bfe_u32 v6, v0, 5, 1"); g("v_lshl_add_u32 v4, v6, 2, v4"); g("v_add_u32 v4, v4, v2")
    g("v_lshrrev_b32 v6, 6, v0"); g.nop(); g("v_readfirstlane_b32 s6, v6"); g("v_lshlrev_b32 v5, 4, v0")
    g("s_cmp_ge_u32 s2, 2136"); g("s_cbranch_scc1 K0_wo")
    g("s_load_dwordx2 s[8:9], s[0:1], 48"); g("s_waitcnt lgkmcnt(0)"); srd(g, 8, 0, 1792*896); srd(g, 24, 9, 0x4000000)
    g("s_sub_u32 s4, s2, 1744"); g("s_lshl_b32 s5, s4, 2"); g("s_add_u32 s5, s5, s6")
    g("s_mul_hi_u32 s7, s5, 0x1249250"); g("s_mul_i32 s31, s7, 224"); g("s_sub_u32 s31, s5, s31")
    g("s_lshr_b32 s32, s31, 1"); g("s_and_b32 s33, s31, 1")
    g("s_mul_i32 s32, s32, {}".format(16*896)); g("s_lshl_b32 s7, s7, 7"); g("s_lshl_b32 s33, s33, 6"); g("s_add_u32 s32, s32, s7"); g("s_add_u32 s32, s32, s33")
    g("s_movk_i32 s31, 896"); g("v_mul_lo_u32 v4, v4, s31"); g("v_lshl_add_u32 v4, v3, 4, v4")
    g("buffer_load_dwordx4 v[8:11], v4, s[8:11], s32 offen"); g("s_lshl_b32 s30, s4, 12"); g(f"s_add_u32 s30, s30, {WS_W2}")
    g("s_waitcnt vmcnt(0)"); g("buffer_store_dwordx4 v[8:11], v5, s[24:27], s30 offen"); g("s_branch K0_done")
    g.lab("K0_wo")
    g("s_load_dwordx2 s[8:9], s[0:1], 16"); g("s_waitcnt lgkmcnt(0)"); srd(g, 8, 0, 448*896); srd(g, 24, 9, 0x4000000)
    g("s_sub_u32 s4, s2, 2136"); g("s_lshl_b32 s5, s4, 2"); g("s_add_u32 s5, s5, s6")
    g("s_lshr_b32 s7, s5, 5"); g("s_and_b32 s31, s5, 31"); g("s_lshr_b32 s32, s31, 1"); g("s_and_b32 s33, s31, 1")
    g("s_lshl_b32 s33, s33, 4"); g("v_add_u32 v4, s33, v4"); g("v_min_u32 v4, 27, v4")
    g("s_mul_i32 s32, s32, {}".format(28*896)); g("s_lshl_b32 s7, s7, 6"); g("s_add_u32 s32, s32, s7")
    g("s_movk_i32 s31, 896"); g("v_mul_lo_u32 v4, v4, s31"); g("v_lshl_add_u32 v4, v3, 4, v4")
    g("buffer_load_dwordx4 v[8:11], v4, s[8:11], s32 offen"); g("s_lshl_b32 s30, s4, 12"); g(f"s_add_u32 s30, s30, {WS_WO}")
    g("s_waitcnt vmcnt(0)"); g("buffer_store_dwordx4 v[8:11], v5, s[24:27], s30 offen")
    g.lab("K0_done"); g("s_endpgm")
    return g.o

def k1():
    g = G()
    A = 16; BF = 192; T = 216; PK = 224; VV = 232; KVA = 240
    SLAB = 28672; RED = 2*SLAB
    g("s_cmp_ge_u32 s2, 256"); g("s_cbranch_scc1 K1_done")
    g("s_load_dwordx2 s[12:13], s[0:1], 8")
    g("s_load_dwordx2 s[16:17], s[0:1], 32"); g("s_load_dwordx2 s[20:21], s[0:1], 40")
    g("s_load_dwordx2 s[24:25], s[0:1], 72")
    consts(g)
    g("s_bfe_u32 s4, s2, 0x30004"); g("s_and_b32 s5, s2, 15")
    g("v_and_b32 v1, 63, v0"); g("v_lshrrev_b32 v2, 6, v0")
    g.nop(); g("v_readfirstlane_b32 s6, v2")
    g("s_waitcnt lgkmcnt(0)")
    srd(g, 12, 1, 448*2688); srd(g, 16, 4, 448*3584); srd(g, 20, 5, 448*3584); srd(g, 24, 9, 0x4000000)
    g("s_lshl_b32 s7, s4, 8"); g("s_lshl_b32 s30, s6, 5"); g("s_add_u32 s7, s7, s30")
    g("v_and_b32 v3, 31, v1"); g("v_lshrrev_b32 v4, 5, v1")
    g("v_lshlrev_b32 v5, 4, v1")
    g("v_lshrrev_b32 v6, 5, v1"); g("v_lshlrev_b32 v6, 9, v6")
    g("v_bfe_u32 v7, v1, 2, 2"); g("v_lshl_add_u32 v6, v7, 6, v6")
    g("v_bfe_u32 v7, v1, 4, 1"); g("v_lshl_add_u32 v6, v7, 5, v6")
    g("v_and_b32 v7, 3, v1"); g("v_lshl_add_u32 v6, v7, 3, v6")
    g("v_lshrrev_b32 v7, 4, v1"); g("v_lshlrev_b32 v7, 2, v7"); g("v_bfe_u32 v8, v1, 2, 2"); g("v_add_u32 v7, v7, v8")
    g("s_movk_i32 s30, 3584"); g("v_mul_lo_u32 v7, v7, s30"); g("v_and_b32 v8, 3, v1"); g("v_lshl_add_u32 v7, v8, 4, v7")
    g("v_add_u32 v8, s7, v3")
    g("s_lshr_b32 s30, s7, 5"); g("s_lshl_b32 s31, s30, 15"); g("s_lshl_b32 s33, s5, 11"); g("s_add_u32 s31, s31, s33"); g("v_add_u32 v9, s31, v5")
    g(f"s_mul_i32 s31, s30, {112*1024}"); g(f"s_mul_i32 s33, s5, {7*1024}"); g("s_add_u32 s31, s31, s33"); g(f"s_add_u32 s31, s31, {WS_H}"); g("v_add_u32 v15, s31, v5")
    g("s_mul_i32 s35, s5, 224")
    g("s_cmp_ge_u32 s2, 128"); g("s_cbranch_scc1 K1_typeB")
    accs = {0:128, 1:160, 2:128, 3:160, 4:176, 5:128, 6:144, 7:160, 8:176, 9:128, 10:144}
    def path(units):
        state = {"out": []}
        def load_a():
            g("s_lshr_b32 s30, s7, 5"); g("s_mul_i32 s30, s30, 28672"); g(f"s_add_u32 s30, s30, {WS_XN}")
            for k4 in range(7):
                for q in range(4):
                    ks = 4*k4+q
                    g(f"buffer_load_dwordx4 v[{A+4*ks}:{A+4*ks+3}], v5, s[24:27], s30 offen offset:{q*1024}")
                    state["out"].append(("a", ks, 1))
                g("s_add_u32 s30, s30, 4096")
        pos = {u: i for i, u in enumerate(units)}
        def issue_slab(u):
            base = (WS_WQ + u*SLAB) if u < 3 else (WS_W13 + (u-3)*SLAB)
            g(f"s_mul_i32 s39, s5, {(3 if u < 3 else 8)*SLAB}"); g(f"s_add_u32 s39, s39, {base}")
            for q in range(4):
                if q < 3: g(f"s_add_u32 s38, s6, {8*q}")
                else: g("s_and_b32 s38, s6, 3"); g("s_add_u32 s38, s38, 24")
                g(f"s_lshl_b32 s38, s38, 10"); g(f"s_add_u32 s30, s38, {(pos[u]%2)*SLAB}"); g("s_mov_b32 m0, s30")
                g("s_add_u32 s30, s38, s39")
                g(f"buffer_load_dwordx4 v5, s[24:27], s30 offen lds")
            state["out"].append(("slab", u, 4))
        def wait_for(kind, u):
            n = 0; found = False
            for it in state["out"]:
                if found: n += it[2]
                if it[0] == kind and it[1] == u: found = True
            if found: g(f"s_waitcnt vmcnt({n})")
        issue_slab(units[0]); load_a()
        def epilogue(u):
            e = G()
            if u == 0:
                phi_pack(e, accs[0], PK, T)
                e(f"buffer_store_dwordx4 v[{PK}:{PK+3}], v9, s[24:27], 0 offen")
                e(f"buffer_store_dwordx4 v[{PK+4}:{PK+7}], v9, s[24:27], 0 offen offset:1024"); e.nop(1)
            elif u == 1:
                phi_pack(e, accs[1], PK, T)
                e("v_cmp_gt_u32 vcc, 28, v3"); e.nop(1)
                for i in range(8): e(f"v_cndmask_b32 v{PK+i}, 0, v{PK+i}, vcc")
            elif u == 2:
                ac = accs[2]
                for i in range(8): e(f"v_cvt_pk_bf16_f32 v{VV+i}, v{ac+2*i}, v{ac+2*i+1}")
                e("v_cmp_eq_u32 vcc, 28, v3"); e(f"v_mov_b32 v{T}, 0x3f803f80"); e.nop(1)
                for i in range(8): e(f"v_cndmask_b32 v{VV+i}, v{VV+i}, v{T}, vcc")
                for i in range(16): e(f"v_mov_b32 v{KVA+i}, 0")
                e.nop(1)
                e(f"v_mfma_f32_32x32x16_bf16 v[{KVA}:{KVA+15}], v[{PK}:{PK+3}], v[{VV}:{VV+3}], v[{KVA}:{KVA+15}]")
                e(f"v_mfma_f32_32x32x16_bf16 v[{KVA}:{KVA+15}], v[{PK+4}:{PK+7}], v[{VV+4}:{VV+7}], v[{KVA}:{KVA+15}]")
                e.nop(15); e.nop(3)
                e("v_lshlrev_b32 v10, 4, v1"); e("s_lshl_b32 s36, s6, 12"); e(f"s_add_u32 s36, s36, {RED}"); e("v_add_u32 v10, s36, v10")
                for q in range(4): e(f"ds_write_b128 v10, v[{KVA+4*q}:{KVA+4*q+3}] offset:{q*1024}")
                e("s_waitcnt lgkmcnt(0)"); e("s_barrier")
                e("v_lshlrev_b32 v10, 4, v1"); e("s_lshr_b32 s36, s6, 1"); e("s_lshl_b32 s36, s36, 10"); e("s_and_b32 s37, s6, 1"); e("s_lshl_b32 s37, s37, 3")
                e("s_add_u32 s36, s36, s37"); e(f"s_add_u32 s36, s36, {RED}"); e("v_add_u32 v10, s36, v10")
                for w in range(8): e(f"ds_read_b64 v[{KVA+2*w}:{KVA+2*w+1}], v10 offset:{w*4096}")
                e("s_waitcnt lgkmcnt(0)")
                for w in range(1, 8):
                    for i in range(2): e(f"v_add_f32 v{KVA+i}, v{KVA+i}, v{KVA+2*w+i}")
                e("v_lshlrev_b32 v10, 6, v1"); e("s_lshl_b32 s36, s4, 16"); e("s_lshl_b32 s37, s5, 12"); e("s_add_u32 s36, s36, s37")
                e("s_lshl_b32 s37, s6, 3"); e("s_add_u32 s36, s36, s37"); e(f"s_add_u32 s36, s36, {WS_KVP}")
                e(f"buffer_store_dwordx2 v[{KVA}:{KVA+1}], v10, s[24:27], s36 offen sc0 sc1"); e.nop(1)
            else:
                p = (u-3)//2; G0, G1 = accs[u-1], accs[u]
                for i in range(0, 16, 2):
                    a, b = G0+i, G0+i+1; c, d = G1+i, G1+i+1
                    rnd2(e, a, b, T); rnd2(e, c, d, T); silu_rnd(e, a, b, T)
                    e(f"v_mul_f32 v{a}, v{a}, v{c}"); e(f"v_mul_f32 v{b}, v{b}, v{d}")
                    e(f"v_cvt_pk_bf16_f32 v{PK+i//2}, v{a}, v{b}")
                e(f"s_movk_i32 s39, {p*2048}"); e(f"buffer_store_dwordx4 v[{PK}:{PK+3}], v15, s[24:27], s39 offen")
                if p < 3: e(f"buffer_store_dwordx4 v[{PK+4}:{PK+7}], v15, s[24:27], s39 offen offset:1024")
                e.nop(1)
            return e.o
        D = 4; NB = 6
        pend = []
        for idx, u in enumerate(units):
            wait_for("slab", u)
            g("s_waitcnt lgkmcnt(0)"); g("s_barrier")
            nxt = units[idx+1] if idx+1 < len(units) else None
            if nxt is not None: issue_slab(nxt)
            acc = accs[u]
            for i in range(16): g(f"v_mov_b32 v{acc+i}, 0")
            g(f"v_add_u32 v2, {(idx%2)*SLAB}, v6")
            def rd(ks):
                b = BF + 4*(ks % NB)
                g(f"ds_read_b64_tr_b16 v[{b}:{b+1}], v2 offset:{ks*1024}")
                g(f"ds_read_b64_tr_b16 v[{b+2}:{b+3}], v2 offset:{ks*1024+256}")
            for ks in range(D): rd(ks)
            nslots = 27 if u < 3 or (u-3)&1 else 55
            per = -(-len(pend) // nslots) if pend else 0
            def emit(ls):
                for l in ls:
                    g.o.append(l)
                    if "buffer_store" in l: state["out"].append(("st", u, 1))
            for ks in range(28):
                if ks + D < 28: rd(ks+D)
                if idx == 0: wait_for("a", ks)
                g(f"s_waitcnt lgkmcnt({2*min(D, 27-ks)})")
                b = BF + 4*(ks % NB); a = A + 4*ks
                if u == 0 or u >= 3:
                    g(f"v_mfma_f32_32x32x16_bf16 v[{acc}:{acc+15}], v[{b}:{b+3}], v[{a}:{a+3}], v[{acc}:{acc+15}]")
                else:
                    g(f"v_mfma_f32_32x32x16_bf16 v[{acc}:{acc+15}], v[{a}:{a+3}], v[{b}:{b+3}], v[{acc}:{acc+15}]")
                if ks >= 1:
                    chunk, pend = pend[:per], pend[per:]; emit(chunk)
            if u < 3 or (u-3)&1:
                emit(pend); pend = epilogue(u)
        g.nop(15); g.nop(3)
        g.o += pend
    path([0, 1, 2, 3, 4])
    g("s_waitcnt vmcnt(0)"); g("s_barrier")
    g("s_cmp_lg_u32 s6, 0"); g("s_cbranch_scc1 K1_done")
    g("s_load_dwordx2 s[40:41], s[0:1], 64"); g("s_waitcnt lgkmcnt(0)")
    g("s_lshl_b32 s30, s5, 2"); g("v_mov_b32 v10, s30"); g("v_mov_b32 v11, 1")
    g("s_mov_b64 s[42:43], exec"); g("s_mov_b64 exec, 1")
    g("global_atomic_add v12, v10, v11, s[40:41] sc0 sc1")
    g("s_waitcnt vmcnt(0)"); g("s_mov_b64 exec, s[42:43]"); g.nop(1)
    g("v_readfirstlane_b32 s30, v12"); g.nop(3)
    g("s_cmp_lg_u32 s30, 7"); g("s_cbranch_scc1 K1_done")
    g("v_lshlrev_b32 v3, 6, v1")
    for rb in range(8):
        g("s_lshl_b32 s30, s5, 12"); g(f"s_add_u32 s30, s30, {WS_KVP + rb*65536}")
        for q in range(4): g(f"buffer_load_dwordx4 v[{128+16*rb+4*q}:{131+16*rb+4*q}], v3, s[24:27], s30 offen offset:{q*16} sc0 sc1")
    g("s_waitcnt vmcnt(0)")
    for rb in range(1, 8):
        for i in range(16): g(f"v_add_f32 v{128+i}, v{128+i}, v{128+16*rb+i}")
    for i in range(8): g(f"v_cvt_pk_bf16_f32 v{48+i}, v{128+2*i}, v{129+2*i}")
    g("v_lshlrev_b32 v3, 5, v1"); g("s_lshl_b32 s30, s5, 11"); g(f"s_add_u32 s30, s30, {WS_KV}")
    g("buffer_store_dwordx4 v[48:51], v3, s[24:27], s30 offen"); g("buffer_store_dwordx4 v[52:55], v3, s[24:27], s30 offen offset:16")
    g("s_branch K1_done")
    g.lab("K1_typeB"); path([5, 6, 7, 8, 9, 10])
    g.lab("K1_done"); g("s_endpgm")
    return g.o

def k2():
    g = G()
    ACC = 64; HF = 128; BF = 192; T = 224
    g("s_cmp_ge_u32 s2, 224"); g("s_cbranch_scc1 K2_done")
    g("s_load_dwordx2 s[12:13], s[0:1], 0"); g("s_load_dwordx2 s[16:17], s[0:1], 56"); g("s_load_dwordx2 s[24:25], s[0:1], 72")
    consts(g)
    g("v_and_b32 v1, 63, v0"); g("v_lshrrev_b32 v2, 6, v0"); g.nop(); g("v_readfirstlane_b32 s6, v2")
    g("s_waitcnt lgkmcnt(0)")
    srd(g, 12, 0, 2048*896); srd(g, 16, 7, 2048*896); srd(g, 24, 9, 0x4000000)
    g.lab("K2_gemm")
    g("s_and_b32 s4, s2, 31"); g("s_lshr_b32 s5, s2, 5")
    g("v_and_b32 v3, 31, v1"); g("v_lshrrev_b32 v4, 5, v1")
    g("s_lshl_b32 s7, s4, 6"); g("v_lshlrev_b32 v5, 4, v1"); g(f"s_mul_i32 s30, s4, {2*112*1024}")
    g(f"s_mul_i32 s33, s6, {14*1024}"); g("s_add_u32 s30, s30, s33"); g(f"s_add_u32 s30, s30, {WS_H}"); g("v_add_u32 v5, s30, v5")
    g(f"v_add_u32 v8, {112*1024}, v5")
    g("v_lshrrev_b32 v6, 5, v1"); g("v_lshlrev_b32 v6, 9, v6")
    g("v_bfe_u32 v7, v1, 2, 2"); g("v_lshl_add_u32 v6, v7, 6, v6")
    g("v_bfe_u32 v7, v1, 4, 1"); g("v_lshl_add_u32 v6, v7, 5, v6")
    g("v_and_b32 v7, 3, v1"); g("v_lshl_add_u32 v6, v7, 3, v6"); g("s_lshl_b32 s31, s6, 14"); g("v_add_u32 v6, s31, v6")
    g("v_bfe_u32 v7, v1, 4, 1"); g("v_lshlrev_b32 v7, 3, v7"); g("v_lshrrev_b32 v9, 5, v1"); g("v_lshl_add_u32 v7, v9, 2, v7")
    g("v_bfe_u32 v9, v1, 2, 2"); g("v_add_u32 v7, v7, v9"); g("s_movk_i32 s30, 896"); g("v_mul_lo_u32 v7, v7, s30")
    g("v_and_b32 v9, 3, v1"); g("v_lshl_add_u32 v7, v9, 4, v7")
    g("v_lshlrev_b32 v7, 4, v1")
    g("s_mul_i32 s32, s6, {}".format(14*2048)); g("s_mul_i32 s30, s5, {}".format(224*1024)); g("s_add_u32 s32, s32, s30"); g(f"s_add_u32 s32, s32, {WS_W2}")
    for i in range(64): g(f"v_mov_b32 v{ACC+i}, 0")
    g("v_lshlrev_b32 v9, 4, v1"); g("v_lshlrev_b32 v12, 5, v1")
    for t in range(2):
        for hh in range(2):
            r = 16 + 8*(2*t+hh)
            g("s_lshl_b32 s30, s4, 1"); g(f"s_add_u32 s30, s30, {t}"); g("s_lshl_b32 s30, s30, 15"); g("s_lshl_b32 s33, s6, 12"); g("s_add_u32 s30, s30, s33"); g(f"s_add_u32 s30, s30, {hh*2048}")
            g(f"buffer_load_dwordx4 v[{r}:{r+3}], v9, s[24:27], s30 offen"); g(f"buffer_load_dwordx4 v[{r+4}:{r+7}], v9, s[24:27], s30 offen offset:1024")
    for hh in range(2):
        r = 48 + 8*hh
        g("s_lshl_b32 s30, s6, 12"); g(f"s_add_u32 s30, s30, {WS_KV + hh*2048}")
        g(f"buffer_load_dwordx4 v[{r}:{r+3}], v12, s[24:27], s30 offen"); g(f"buffer_load_dwordx4 v[{r+4}:{r+7}], v12, s[24:27], s30 offen offset:16")
    P = 7
    def issue(ks):
        for un in range(2):
            g(f"s_add_u32 s30, s31, {(ks%8)*2048 + un*1024}"); g("s_mov_b32 m0, s30")
            g(f"s_add_u32 s30, s32, {ks*2048 + un*1024}")
            g(f"buffer_load_dwordx4 v7, s[24:27], s30 offen lds")
        h = HF + 8*(ks % 8)
        g(f"s_movk_i32 s30, {ks*1024}")
        g(f"buffer_load_dwordx4 v[{h}:{h+3}], v5, s[24:27], s30 offen")
        g(f"buffer_load_dwordx4 v[{h+4}:{h+7}], v8, s[24:27], s30 offen")
    for ks in range(P): issue(ks)
    g(f"s_waitcnt vmcnt({4*P})")
    g("v_add_u32 v14, 32, v3"); g("v_lshlrev_b32 v14, 2, v14")
    OA = 208; T2 = 240
    for t in range(2):
        for i in range(32): g(f"v_mov_b32 v{OA+i}, 0")
        g.nop(1)
        for hh in range(2):
            a = OA + 16*hh; pq = 16 + 8*(2*t+hh); kv = 48 + 8*hh
            g(f"v_mfma_f32_32x32x16_bf16 v[{a}:{a+15}], v[{kv}:{kv+3}], v[{pq}:{pq+3}], v[{a}:{a+15}]")
            g(f"v_mfma_f32_32x32x16_bf16 v[{a}:{a+15}], v[{kv+4}:{kv+7}], v[{pq+4}:{pq+7}], v[{a}:{a+15}]")
        g.nop(15); g.nop(3)
        for hh in range(2):
            a = OA + 16*hh; of = 16 + 8*(2*t+hh)
            g(f"ds_bpermute_b32 v{T2}, v14, v{a+12}"); g("s_waitcnt lgkmcnt(0)")
            rnd2(g, T2, T2+1, T2+2); g(f"v_add_f32 v{T2}, s91, v{T2}"); rnd2(g, T2, T2+1, T2+2)
            g(f"v_rcp_f32 v{T2}, v{T2}"); g.nop()
            for i in range(0, 16, 2):
                rnd2(g, a+i, a+i+1, T2+2)
                g(f"v_mul_f32 v{a+i}, v{a+i}, v{T2}"); g(f"v_mul_f32 v{a+i+1}, v{a+i+1}, v{T2}")
                g(f"v_cvt_pk_bf16_f32 v{of+i//2}, v{a+i}, v{a+i+1}")
            g("v_cmp_eq_u32 vcc, 0, v4"); g.nop(1)
            g(f"v_cndmask_b32 v{of+6}, 0, v{of+6}, vcc"); g(f"v_cndmask_b32 v{of+7}, 0, v{of+7}, vcc")
    for ks in range(14):
        if ks + P < 14: issue(ks+P)
        g(f"s_waitcnt vmcnt({4*min(P, 13-ks)})")
        o = (ks%8)*2048
        for un in range(2):
            g(f"ds_read_b64_tr_b16 v[{BF+4*un}:{BF+4*un+1}], v6 offset:{o+un*1024}")
            g(f"ds_read_b64_tr_b16 v[{BF+4*un+2}:{BF+4*un+3}], v6 offset:{o+un*1024+256}")
        g("s_waitcnt lgkmcnt(0)")
        h = HF + 8*(ks % 8)
        for un in range(2):
            for t in range(2):
                a = ACC + 16*(2*un+t)
                g(f"v_mfma_f32_32x32x16_bf16 v[{a}:{a+15}], v[{BF+4*un}:{BF+4*un+3}], v[{h+4*t}:{h+4*t+3}], v[{a}:{a+15}]")
    g.nop(15); g.nop(3)
    g("s_barrier")
    g("v_lshlrev_b32 v10, 4, v1"); g("s_lshl_b32 s30, s6, 14"); g("v_add_u32 v10, s30, v10")
    for q in range(16): g(f"ds_write_b128 v10, v[{ACC+4*q}:{ACC+4*q+3}] offset:{q*1024}")
    g("s_waitcnt lgkmcnt(0)"); g("s_barrier")
    g("v_lshlrev_b32 v10, 4, v1"); g("s_lshr_b32 s30, s6, 1"); g("s_lshl_b32 s30, s30, 12"); g("s_and_b32 s33, s6, 1"); g("s_lshl_b32 s33, s33, 11")
    g("s_add_u32 s30, s30, s33"); g("v_add_u32 v10, s30, v10"); g("v_add_u32 v11, 0x10000, v10")
    for w in range(8):
        for q in range(2): g(f"ds_read_b128 v[{ACC+8*w+4*q}:{ACC+8*w+4*q+3}], v{10 if w < 4 else 11} offset:{(w%4)*16384+q*1024}")
    g("s_waitcnt lgkmcnt(0)")
    for w in range(1, 8):
        for i in range(8): g(f"v_add_f32 v{ACC+i}, v{ACC+i}, v{ACC+8*w+i}")
    for i in range(0, 8, 2):
        rnd2(g, ACC+i, ACC+i+1, T); silu_rnd(g, ACC+i, ACC+i+1, T)
        g(f"v_cvt_pk_bf16_f32 v{BF+i//2}, v{ACC+i}, v{ACC+i+1}")
    for i in range(4): g(f"v_mov_b32 v{200+i}, v{BF+i}")
    g("s_bfe_u32 s30, s6, 0x10001"); g("s_lshl_b32 s30, s30, 5"); g("s_add_u32 s30, s30, s7"); g("v_add_u32 v13, s30, v3")
    g("s_movk_i32 s30, 896"); g("v_mul_lo_u32 v13, v13, s30"); g("v_lshl_add_u32 v13, v4, 3, v13")
    g("s_lshr_b32 s34, s6, 2"); g("s_lshl_b32 s34, s34, 6"); g("s_lshl_b32 s33, s5, 7"); g("s_add_u32 s34, s34, s33"); g("s_and_b32 s33, s6, 1"); g("s_lshl_b32 s33, s33, 5"); g("s_add_u32 s34, s34, s33")
    g("buffer_load_dwordx2 v[204:205], v13, s[12:15], s34 offen"); g("buffer_load_dwordx2 v[206:207], v13, s[12:15], s34 offen offset:16")
    g("s_barrier")
    for un in range(2):
        for k4 in range(4):
            g(f"s_add_u32 s30, s31, {(un*4+k4)*1024}"); g("s_mov_b32 m0, s30")
            g("s_lshl_b32 s30, s5, 16"); g("s_lshl_b32 s33, s6, 12"); g("s_add_u32 s30, s30, s33"); g(f"s_add_u32 s30, s30, {WS_WO + un*32768 + k4*1024}")
            g("buffer_load_dwordx4 v7, s[24:27], s30 offen lds")
    for i in range(64): g(f"v_mov_b32 v{ACC+i}, 0")
    g("s_waitcnt vmcnt(0)")
    for k4 in range(4):
        for un in range(2):
            o = (un*4+k4)*1024
            g(f"ds_read_b64_tr_b16 v[{BF}:{BF+1}], v6 offset:{o}"); g(f"ds_read_b64_tr_b16 v[{BF+2}:{BF+3}], v6 offset:{o+256}")
            g("s_waitcnt lgkmcnt(0)")
            for t in range(2):
                a = ACC + 16*(2*un+t); of = 16 + 8*(2*t + k4//2) + 4*(k4%2)
                g(f"v_mfma_f32_32x32x16_bf16 v[{a}:{a+15}], v[{BF}:{BF+3}], v[{of}:{of+3}], v[{a}:{a+15}]")
            g.nop(7)
    g.nop(15); g.nop(3)
    g("s_barrier")
    g("v_lshlrev_b32 v10, 4, v1"); g("s_lshl_b32 s30, s6, 14"); g("v_add_u32 v10, s30, v10")
    for q in range(16): g(f"ds_write_b128 v10, v[{ACC+4*q}:{ACC+4*q+3}] offset:{q*1024}")
    g("s_waitcnt lgkmcnt(0)"); g("s_barrier")
    g("v_lshlrev_b32 v10, 4, v1"); g("s_lshr_b32 s30, s6, 1"); g("s_lshl_b32 s30, s30, 12"); g("s_and_b32 s33, s6, 1"); g("s_lshl_b32 s33, s33, 11")
    g("s_add_u32 s30, s30, s33"); g("v_add_u32 v10, s30, v10"); g("v_add_u32 v11, 0x10000, v10")
    for w in range(8):
        for q in range(2): g(f"ds_read_b128 v[{ACC+8*w+4*q}:{ACC+8*w+4*q+3}], v{10 if w < 4 else 11} offset:{(w%4)*16384+q*1024}")
    g("s_waitcnt lgkmcnt(0)")
    for w in range(1, 8):
        for i in range(8): g(f"v_add_f32 v{ACC+i}, v{ACC+i}, v{ACC+8*w+i}")
    for i in range(0, 8, 2):
        a, b = ACC+i, ACC+i+1
        rnd2(g, a, b, T)
        g(f"v_lshlrev_b32 v{T}, 16, v{200+i//2}"); g(f"v_and_b32 v{T+1}, 0xffff0000, v{200+i//2}")
        g(f"v_mul_f32 v{a}, v{a}, v{T}"); g(f"v_mul_f32 v{b}, v{b}, v{T+1}")
        rnd2(g, a, b, T)
        g(f"v_lshlrev_b32 v{T}, 16, v{204+i//2}"); g(f"v_and_b32 v{T+1}, 0xffff0000, v{204+i//2}")
        g(f"v_add_f32 v{a}, v{a}, v{T}"); g(f"v_add_f32 v{b}, v{b}, v{T+1}")
        g(f"v_cvt_pk_bf16_f32 v{204+i//2}, v{a}, v{b}")
    g("buffer_store_dwordx2 v[204:205], v13, s[16:19], s34 offen"); g("buffer_store_dwordx2 v[206:207], v13, s[16:19], s34 offen offset:16")
    g.lab("K2_done"); g("s_endpgm")
    return g.o

def k3():
    g = G()
    ACC = 64; PQF = 96; KVF = 112; BF = 128; OF = 144; T = 160; GX = 176
    g("s_cmp_ge_u32 s2, 128"); g("s_cbranch_scc1 K3_done")
    g("s_load_dwordx2 s[8:9], s[0:1], 16"); g("s_load_dwordx2 s[12:13], s[0:1], 0"); g("s_load_dwordx2 s[16:17], s[0:1], 56")
    g("s_load_dwordx2 s[24:25], s[0:1], 72")
    consts(g)
    g("v_and_b32 v1, 63, v0"); g("v_lshrrev_b32 v2, 6, v0"); g.nop(); g("v_readfirstlane_b32 s6, v2")
    g("s_waitcnt lgkmcnt(0)")
    srd(g, 8, 2, 448*896); srd(g, 12, 0, 2048*896); srd(g, 16, 7, 2048*896); srd(g, 24, 9, 0x4000000)
    g("s_and_b32 s4, s2, 63"); g("s_lshr_b32 s5, s2, 6"); g("s_lshl_b32 s7, s4, 5")
    g("v_and_b32 v3, 31, v1"); g("v_lshrrev_b32 v4, 5, v1")
    g("v_lshlrev_b32 v5, 4, v1"); g("s_lshl_b32 s30, s4, 15"); g("v_add_u32 v5, s30, v5")
    g("v_lshlrev_b32 v8, 5, v1")
    g("v_add_u32 v14, 32, v3"); g("v_lshlrev_b32 v14, 2, v14")
    g("v_lshlrev_b32 v10, 4, v1"); g(f"v_add_u32 v10, {8*16384}, v10")
    for hh in range(2):
        g("s_lshl_b32 s30, s6, 12"); g(f"s_add_u32 s30, s30, {hh*2048}")
        g(f"buffer_load_dwordx4 v[{PQF+8*hh}:{PQF+8*hh+3}], v5, s[24:27], s30 offen"); g(f"buffer_load_dwordx4 v[{PQF+8*hh+4}:{PQF+8*hh+7}], v5, s[24:27], s30 offen offset:1024")
        g("s_lshl_b32 s30, s6, 12"); g(f"s_add_u32 s30, s30, {WS_KV + hh*2048}")
        g(f"buffer_load_dwordx4 v[{KVF+8*hh}:{KVF+8*hh+3}], v8, s[24:27], s30 offen"); g(f"buffer_load_dwordx4 v[{KVF+8*hh+4}:{KVF+8*hh+7}], v8, s[24:27], s30 offen offset:16")
    g("v_lshrrev_b32 v6, 5, v1"); g("v_lshlrev_b32 v6, 9, v6")
    g("v_bfe_u32 v7, v1, 2, 2"); g("v_lshl_add_u32 v6, v7, 6, v6")
    g("v_bfe_u32 v7, v1, 4, 1"); g("v_lshl_add_u32 v6, v7, 5, v6")
    g("v_and_b32 v7, 3, v1"); g("v_lshl_add_u32 v6, v7, 3, v6"); g("s_lshl_b32 s31, s6, 14"); g("v_add_u32 v6, s31, v6")
    g("v_bfe_u32 v7, v1, 4, 1"); g("v_lshlrev_b32 v7, 3, v7"); g("v_lshrrev_b32 v9, 5, v1"); g("v_lshl_add_u32 v7, v9, 2, v7")
    g("v_bfe_u32 v9, v1, 2, 2"); g("v_add_u32 v7, v7, v9")
    g("v_add_u32 v12, 16, v7"); g("v_min_u32 v12, 27, v12")
    g("s_movk_i32 s30, 896"); g("v_mul_lo_u32 v7, v7, s30"); g("v_mul_lo_u32 v12, v12, s30")
    g("v_and_b32 v9, 3, v1"); g("v_lshl_add_u32 v7, v9, 4, v7"); g("v_lshl_add_u32 v12, v9, 4, v12")
    g("v_add_u32 v13, s7, v3"); g("s_movk_i32 s30, 896"); g("v_mul_lo_u32 v13, v13, s30")
    g("s_min_u32 s34, s6, 6")
    g("s_mul_i32 s33, s5, 7"); g("s_add_u32 s33, s33, s34"); g("s_lshl_b32 s32, s33, 6")
    g(f"s_mul_i32 s30, s4, {28*1024}"); g("s_lshl_b32 s35, s33, 11"); g("s_add_u32 s30, s30, s35"); g(f"s_add_u32 s30, s30, {WS_G}"); g("v_lshlrev_b32 v11, 4, v1")
    g(f"buffer_load_dwordx4 v[{GX}:{GX+3}], v11, s[24:27], s30 offen"); g(f"buffer_load_dwordx4 v[{GX+4}:{GX+7}], v11, s[24:27], s30 offen offset:1024")
    g("v_lshl_add_u32 v11, v4, 3, v13")
    for q in range(4): g(f"buffer_load_dwordx2 v[{GX+8+2*q}:{GX+9+2*q}], v11, s[12:15], s32 offen offset:{q*16}")
    P = 15
    g("v_lshlrev_b32 v7, 4, v1"); g("s_lshl_b32 s36, s33, 15"); g(f"s_add_u32 s36, s36, {WS_WO}")
    def issue(ks):
        g(f"s_add_u32 s30, s31, {(ks%16)*1024}"); g("s_mov_b32 m0, s30")
        g(f"s_add_u32 s30, s36, {ks*1024}")
        g(f"buffer_load_dwordx4 v7, s[24:27], s30 offen lds")
    for ks in range(P): issue(ks)
    g(f"s_waitcnt vmcnt({6+P})")
    for hh in range(2):
        a = ACC + 16*hh
        for i in range(16): g(f"v_mov_b32 v{a+i}, 0")
        g.nop(1)
        g(f"v_mfma_f32_32x32x16_bf16 v[{a}:{a+15}], v[{KVF+8*hh}:{KVF+8*hh+3}], v[{PQF+8*hh}:{PQF+8*hh+3}], v[{a}:{a+15}]")
        g(f"v_mfma_f32_32x32x16_bf16 v[{a}:{a+15}], v[{KVF+8*hh+4}:{KVF+8*hh+7}], v[{PQF+8*hh+4}:{PQF+8*hh+7}], v[{a}:{a+15}]")
    g.nop(15); g.nop(3)
    for hh in range(2):
        a = ACC + 16*hh
        g(f"ds_bpermute_b32 v{T}, v14, v{a+12}"); g("s_waitcnt lgkmcnt(0)")
        rnd2(g, T, T+1, T+2); g(f"v_add_f32 v{T}, s91, v{T}"); rnd2(g, T, T+1, T+2)
        g(f"v_rcp_f32 v{T}, v{T}"); g.nop()
        for i in range(0, 16, 2):
            rnd2(g, a+i, a+i+1, T+2)
            g(f"v_mul_f32 v{a+i}, v{a+i}, v{T}"); g(f"v_mul_f32 v{a+i+1}, v{a+i+1}, v{T}")
            g(f"v_cvt_pk_bf16_f32 v{OF+i//2}, v{a+i}, v{a+i+1}")
        g("v_cmp_eq_u32 vcc, 0, v4"); g.nop(1)
        g(f"v_cndmask_b32 v{OF+6}, 0, v{OF+6}, vcc"); g(f"v_cndmask_b32 v{OF+7}, 0, v{OF+7}, vcc")
        g("s_lshl_b32 s30, s6, 12"); g(f"v_add_u32 v15, s30, v10")
        g(f"ds_write_b128 v15, v[{OF}:{OF+3}] offset:{hh*2048}"); g(f"ds_write_b128 v15, v[{OF+4}:{OF+7}] offset:{hh*2048+1024}")
    g("s_waitcnt lgkmcnt(0)"); g("s_barrier")
    g("s_cmp_eq_u32 s6, 7"); g("s_cbranch_scc1 K3_done")
    for i in range(16): g(f"v_mov_b32 v{ACC+i}, 0")
    for ks in range(32):
        if ks + P < 32: issue(ks+P)
        g(f"s_waitcnt vmcnt({min(P, 31-ks)})")
        o = (ks%16)*1024; b = BF + 8*(ks%2)
        g(f"ds_read_b64_tr_b16 v[{b}:{b+1}], v6 offset:{o}"); g(f"ds_read_b64_tr_b16 v[{b+2}:{b+3}], v6 offset:{o+256}")
        g(f"ds_read_b128 v[{b+4}:{b+7}], v10 offset:{ks*1024}")
        g("s_waitcnt lgkmcnt(0)")
        g(f"v_mfma_f32_32x32x16_bf16 v[{ACC}:{ACC+15}], v[{b}:{b+3}], v[{b+4}:{b+7}], v[{ACC}:{ACC+15}]")
    g.nop(15); g.nop(3)
    for i in range(0, 16, 2):
        a, b = ACC+i, ACC+i+1
        rnd2(g, a, b, T)
        g(f"v_lshlrev_b32 v{T}, 16, v{GX+i//2}"); g(f"v_and_b32 v{T+1}, 0xffff0000, v{GX+i//2}")
        g(f"v_mul_f32 v{a}, v{a}, v{T}"); g(f"v_mul_f32 v{b}, v{b}, v{T+1}")
        rnd2(g, a, b, T)
        g(f"v_lshlrev_b32 v{T}, 16, v{GX+8+i//2}"); g(f"v_and_b32 v{T+1}, 0xffff0000, v{GX+8+i//2}")
        g(f"v_add_f32 v{a}, v{a}, v{T}"); g(f"v_add_f32 v{b}, v{b}, v{T+1}")
        g(f"v_cvt_pk_bf16_f32 v{GX+8+i//2}, v{a}, v{b}")
    for q in range(4): g(f"buffer_store_dwordx2 v[{GX+8+2*q}:{GX+9+2*q}], v11, s[16:19], s32 offen offset:{q*16}")
    g.lab("K3_done"); g("s_endpgm")
    return g.o

hdr = open(f"cdna_kernels/{NAME}.s.ref").read().split("; Override")[0]
out = hdr
out += "; @launch kernel=k0_kernel grid=(2248,1,1) block=(256,1,1) lds=0\n"
out += "; @launch kernel=k1_kernel grid=(256,1,1) block=(512,1,1) lds=90112\n"
out += "; @launch kernel=k2_kernel grid=(224,1,1) block=(512,1,1) lds=131072\n"
out += '.amdgcn_target "amdgcn-amd-amdhsa--gfx950"\n.text\n'
for nm, f in (("k0_kernel", k0), ("k1_kernel", k1), ("k2_kernel", k2)):
    out += f".globl {nm}\n.p2align 8\n.type {nm},@function\n{nm}:\n" + "\n".join(f()) + "\n"
out += kdesc("k0_kernel", 32) + kdesc("k1_kernel", 256) + kdesc("k2_kernel", 256)
open(f"cdna_kernels/{NAME}.s", "w").write(out)
```
